```python
import torch

def _softmax(x, axis=-1):
    return torch.softmax(x, dim=axis)

def _gelu(x):
    return torch.nn.functional.gelu(x, approximate='tanh')

def _silu(x):
    return torch.nn.functional.silu(x)

def _sigmoid(x):
    return torch.sigmoid(x)

def _layernorm(x, axis=-1, eps=1e-05):
    m = x.mean(dim=axis, keepdim=True)
    v = x.var(dim=axis, keepdim=True, unbiased=False)
    return (x - m) / torch.sqrt(v + eps)

def _scatter_add(tgt, idx, src, axis=0):
    return tgt.clone().index_add_(axis, idx, src)

def _segment_sum(src, seg, n):
    out = torch.zeros((n,) + src.shape[1:], dtype=src.dtype)
    return out.index_add_(0, seg, src)

def _pad(x, pw):
    flat = tuple((v for pair in reversed(pw) for v in pair))
    return torch.nn.functional.pad(x, flat)
kernel_name = 'parallel_sum__ssm_conv_h3__mixer_gmlp__prompt'

def setup_inputs():

    _w = lambda a: (lambda t: t.to(torch.bfloat16) if t.is_floating_point() else t)(torch.as_tensor(a))

    def _A_setup():
        B, S, D = (1, 2048, 1024)
        ks = 4
        return {'q': _w((lambda *s: torch.randn(*s, dtype=torch.bfloat16) * 0.05)(B, S, D)), 'k': _w((lambda *s: torch.randn(*s, dtype=torch.bfloat16) * 0.8)(B, S, D)), 'v': _w((lambda *s: torch.randn(*s, dtype=torch.bfloat16) * 0.8)(B, S, D)), 'shift_k': _w((lambda *s: torch.randn(*s, dtype=torch.bfloat16) * 0.8)(D, ks) * 0.5), 'ssm_k': _w((lambda *s: torch.randn(*s, dtype=torch.bfloat16) * 3.2)(D, S) * (1.0 / S ** 0.5)), 'ssm_D': _w((lambda *s: torch.randn(*s, dtype=torch.bfloat16) * 0.8)(D))}
    _A_in = _A_setup()

    def _B_setup():
        B, S, D, F = (1, 2048, 1024, 3584)
        Fh = F // 2
        return {'x': _w((lambda *s: torch.randn(*s, dtype=torch.bfloat16) * 0.05)(B, S, D)), 'w_in': _w((lambda *s: torch.randn(*s, dtype=torch.bfloat16) * 0.4)(D, 2 * Fh)), 'w_sp': _w(0.01 * (lambda *s: torch.randn(*s, dtype=torch.bfloat16) * 0.4)(S, S)), 'b_sp': _w(1.0 + 0.01 * (lambda *s: torch.randn(*s, dtype=torch.bfloat16) * 0.05)(S)), 'w_out': _w((lambda *s: torch.randn(*s, dtype=torch.bfloat16) * 0.05)(Fh, D))}
    _B_in = _B_setup()
    return {'A_q': _A_in['q'], 'A_k': _A_in['k'], 'A_v': _A_in['v'], 'A_shift_k': _A_in['shift_k'], 'A_ssm_k': _A_in['ssm_k'], 'A_ssm_D': _A_in['ssm_D'], 'B_x': _B_in['x'], 'B_w_in': _B_in['w_in'], 'B_w_sp': _B_in['w_sp'], 'B_b_sp': _B_in['b_sp'], 'B_w_out': _B_in['w_out']}

def reference(A_q, A_k, A_v, A_shift_k, A_ssm_k, A_ssm_D, B_x, B_w_in, B_w_sp, B_b_sp, B_w_out):

    def _A_ref(q, k, v, shift_k, ssm_k, ssm_D):
        B, S, D = q.shape
        ks = shift_k.shape[-1]
        k_pad = _pad(k, ((0, 0), (ks - 1, 0), (0, 0)))
        k_shift = torch.zeros_like(k)
        for t in range(ks):
            k_shift = k_shift + k_pad[:, t:t + S, :] * shift_k[:, ks - 1 - t][None, None, :]
        kv = k_shift * v
        L = 2 * S
        kv_pad = _pad(kv, ((0, 0), (0, S), (0, 0)))
        kf_pad = _pad(ssm_k, ((0, 0), (0, S)))
        kv_f = (lambda x, axes=(-2, -1): torch.fft.rfft2(x.float(), dim=axes))(kv_pad[:, None, :, :], axes=(1, 2))
        kf_f = (lambda x, axes=(-2, -1): torch.fft.rfft2(x.float(), dim=axes))(kf_pad[:, None, :], axes=(1, 2))
        kf_f = (lambda x, *d: x.permute(*d))(kf_f, 1, 2, 0)
        y_f = kv_f * kf_f[None, :, :, :]
        y = (lambda x, s, axes=(-2, -1): torch.fft.irfft2(x, s=s, dim=axes).to(torch.bfloat16))(y_f, (1, L), axes=(1, 2))[:, 0, :S, :]
        y = y + kv * ssm_D[None, None, :]
        return q * y

    def _B_ref(x, w_in, w_sp, b_sp, w_out):
        B, S, D = x.shape
        F = w_in.shape[-1]
        Fh = F // 2
        z = _gelu(torch.einsum('bsd,df->bsf', x, w_in))
        z1 = z[..., :Fh].clone()
        z2 = _layernorm(z[..., Fh:], axis=-1)
        g = torch.einsum('ts,bsf->btf', w_sp, z2) + b_sp[None, :, None]
        return torch.einsum('bsf,fd->bsd', z1 * g, w_out)
    x = A_q
    xn = _layernorm(x, axis=-1)
    return x + _A_ref(xn, A_k, A_v, A_shift_k, A_ssm_k, A_ssm_D) + _B_ref(xn, B_w_in, B_w_sp, B_b_sp, B_w_out)
```

```python
import re

REG = re.compile(r'\b([vas])\[(\d+):(\d+)\]|\b([vas])(\d+)\b|\b(vcc|exec|m0|scc)\b')

def regs_of(op):
    out = []
    for m in REG.finditer(op):
        if m.group(1):
            out += [(m.group(1), i) for i in range(int(m.group(2)), int(m.group(3)) + 1)]
        elif m.group(4):
            out.append((m.group(4), int(m.group(5))))
        else:
            out.append((m.group(6), 0))
    return out

TRANS = ('v_exp_f32', 'v_log_f32', 'v_rcp_f32', 'v_rsq_f32', 'v_sqrt_f32', 'v_sin_f32', 'v_cos_f32')

class I:
    def __init__(self, text, tag=None, need=None):
        self.text = text.strip()
        self.tag = tag
        self.need = need
        t = self.text.split(';')[0].strip()
        self.is_label = t.endswith(':')
        self.is_dir = t.startswith('.')
        p = t.split(None, 1)
        self.op = p[0] if p else ''
        rest = p[1] if len(p) > 1 else ''
        self.ops = [x.strip() for x in re.split(r',(?![^\[]*\])', rest)] if rest else []
        self.mods = ''
        if self.ops:
            last = self.ops[-1].split()
            self.mods = ' '.join(last[1:])
            self.ops[-1] = last[0]
        self.classify()

    def classify(self):
        op = self.op; o = self.ops
        self.kind = 'other'; self.defs = []; self.uses = []
        self.cnt = None
        self.async_defs = False
        R = regs_of
        if self.is_label or self.is_dir or not op:
            self.kind = 'pseudo'; return
        base = re.sub(r'_(e32|e64|dpp|sdwa)$', '', op)
        if op.startswith('v_mfma'):
            self.kind = 'mfma'; self.defs = R(o[0]); self.uses = R(o[1]) + R(o[2]) + R(o[3])
            self.srcc = R(o[3]); self.srcab = R(o[1]) + R(o[2])
            self.passes = 8 if '32x32' in op else 4
        elif op.startswith('buffer_') or op.startswith('global_'):
            self.kind = 'vmem'; self.cnt = 'vm'
            lds = ' lds' in (' ' + self.mods)
            if op.startswith('buffer_load'):
                if lds:
                    self.uses = sum((R(x) for x in o), []) + [('m0', 0)]; self.isdma = True
                else:
                    self.defs = R(o[0]); self.uses = sum((R(x) for x in o[1:]), []); self.async_defs = True
            elif op.startswith('global_load'):
                self.defs = R(o[0]); self.uses = sum((R(x) for x in o[1:]), []); self.async_defs = True
            elif op.startswith('buffer_store') or op.startswith('global_store'):
                self.uses = sum((R(x) for x in o), [])
                self.store_data = R(o[0]) if op.startswith('buffer') else R(o[1])
            elif 'atomic' in op:
                self.uses = sum((R(x) for x in o), [])
                if 'sc0' in self.mods:
                    self.defs = R(o[0]); self.async_defs = True
            elif op in ('buffer_inv', 'buffer_wbl2'):
                pass
            else:
                raise ValueError(op)
            self.uses.append(('exec', 0))
        elif op.startswith('ds_'):
            self.kind = 'ds'; self.cnt = 'lgkm'
            if op.startswith('ds_read') or op.startswith('ds_bpermute') or op.startswith('ds_permute') or op.startswith('ds_swizzle'):
                self.defs = R(o[0]); self.uses = sum((R(x) for x in o[1:]), []); self.async_defs = True
            else:
                self.uses = sum((R(x) for x in o), [])
        elif op.startswith('s_load') or op.startswith('s_buffer_load') or op in ('s_memtime', 's_memrealtime'):
            self.kind = 'smem'; self.cnt = 'lgkm'; self.defs = R(o[0]); self.uses = sum((R(x) for x in o[1:]), []); self.async_defs = True
        elif op == 's_waitcnt':
            self.kind = 'wait'
        elif op in ('s_nop', 's_barrier', 's_endpgm', 's_sleep', 's_setprio') :
            self.kind = 'sopp'
        elif op.startswith('s_cbranch') or op == 's_branch':
            self.kind = 'branch'
        elif op.startswith('s_cmp') or op.startswith('s_bitcmp'):
            self.kind = 'salu'; self.uses = sum((R(x) for x in o), []); self.defs = [('scc', 0)]
        elif op.startswith('s_'):
            self.kind = 'salu'; self.defs = R(o[0]); self.uses = sum((R(x) for x in o[1:]), [])
            if op.startswith('s_cselect') or op == 's_addc_u32': self.uses.append(('scc', 0))
            if 'saveexec' in op: self.defs.append(('exec', 0))
        elif op.startswith('v_'):
            self.kind = 'valu'
            if base.startswith('v_cmp'):
                self.defs = R(o[0]); self.uses = sum((R(x) for x in o[1:]), [])
                if base.startswith('v_cmpx'): self.defs.append(('exec', 0))
            elif base in ('v_permlane16_swap_b32', 'v_permlane32_swap_b32', 'v_swap_b32'):
                self.defs = R(o[0]) + R(o[1]); self.uses = R(o[0]) + R(o[1])
            elif base in ('v_add_co_u32', 'v_sub_co_u32', 'v_addc_co_u32', 'v_subb_co_u32'):
                self.defs = R(o[0]) + R(o[1]); self.uses = sum((R(x) for x in o[2:]), [])
            else:
                self.defs = R(o[0]); self.uses = sum((R(x) for x in o[1:]), [])
                if base in ('v_fmac_f32', 'v_mac_f32', 'v_writelane_b32', 'v_dot2c_f32_bf16') or op.endswith('_dpp') or op.endswith('_sdwa') or 'row_' in self.mods or 'quad_perm' in self.mods:
                    self.uses += R(o[0])
                if base == 'v_cndmask_b32' and len(o) == 3: self.uses.append(('vcc', 0))
            self.trans = base in TRANS
            self.dpp = op.endswith('_dpp') or 'row_' in self.mods or 'quad_perm' in self.mods or 'wave_' in self.mods
            self.perml = base.startswith('v_permlane')
            self.rdlane = base in ('v_readfirstlane_b32', 'v_readlane_b32')
            self.sdwa = op.endswith('_sdwa') or ('op_sel' in self.mods and not op.startswith('v_pk_')) or 'dst_sel' in self.mods
        else:
            raise ValueError('unknown op ' + op)

    def states(self):
        if self.kind == 'pseudo': return 0
        if self.op == 's_nop': return int(self.ops[0], 0) + 1
        return 1

def need_i(*tags):
    i = I('; need ' + ' '.join(str(t) for t in tags)); i.kind = 'pseudo'; i.need = list(tags); i.op = ''
    return i
def bump_i(name):
    i = I('; bump ' + name); i.kind = 'pseudo'; i.op = ''; i.bump = name
    return i

class Prog:
    def __init__(self):
        self.items = []
        self.stack = [self.items]
    def __call__(self, text, tag=None, need=None):
        for l in text.split('\n'):
            if l.strip(): self.stack[-1].append(I(l, tag, need))
    def add(self, i): self.stack[-1].append(i)
    def need(self, *tags):
        self.stack[-1].append(need_i(*tags))
    def bump(self, name):
        self.stack[-1].append(bump_i(name))
    def loop_begin(self):
        l = []; self.stack[-1].append(('loop', l)); self.stack.append(l)
    def loop_end(self): self.stack.pop()

    def _flatten(self, items, reps):
        out = []
        for it in items:
            if isinstance(it, tuple):
                for _ in range(reps): out += self._flatten(it[1], reps)
            else: out.append(it)
        return out

    def insert_waits(self, age=8):
        seq = self._flatten(self.items, 3)
        mf = [0]
        vm = []; lg = []
        req = {}
        def settle(q, n):
            while len(q) > n: q.pop(0)
        gen = {}
        class Dyn:
            def __init__(s, x, g):
                s.x = x; s.g = g; s.kind = x.kind; s.async_defs = x.async_defs; s.defs = x.defs; s.cnt = x.cnt; s.tag = x.tag; s.mf = mf[0]
        def tag_hit(need, d):
            for t in need:
                if isinstance(t, tuple):
                    if d.tag == t[0] and d.g <= gen.get(t[0], 0) - t[1]: return True
                elif d.tag == t: return True
            return False
        for ins in seq:
            if hasattr(ins, 'bump'):
                gen[ins.bump] = gen.get(ins.bump, 0) + 1; continue
            if ins.kind == 'wait':
                m = re.search(r'vmcnt\((\d+)\)', ins.text)
                if m: settle(vm, int(m.group(1)))
                m = re.search(r'lgkmcnt\((\d+)\)', ins.text)
                if m:
                    n = int(m.group(1))
                    if n == 0 or not any(x.kind == 'smem' for x in lg): settle(lg, n)
                continue
            touched = set(ins.uses) | set(ins.defs)
            nv = nl = None
            for q, name in ((vm, 'vm'), (lg, 'lgkm')):
                idx = -1
                for k, x in enumerate(q):
                    hit = False
                    if x.async_defs and touched & set(x.defs):
                        if ins.cnt == x.cnt and ins.async_defs and ins.kind == x.kind and ins.kind != 'smem' and not (set(ins.uses) & set(x.defs)):
                            hit = False
                        else: hit = True
                    if ins.need and tag_hit(ins.need, x): hit = True
                    if hit: idx = k
                if idx >= 0:
                    if name == 'lgkm':
                        while idx + 1 < len(q) and q[idx + 1].mf <= mf[0] - age: idx += 1
                    n = len(q) - 1 - idx
                    if name == 'lgkm' and any(x.kind == 'smem' for x in q): n = 0
                    n = min(n, 63 if name == 'vm' else 15)
                    if name == 'vm': nv = n
                    else: nl = n
            if nv is not None or nl is not None:
                r = req.setdefault(id(ins), [None, None])
                if nv is not None: r[0] = nv if r[0] is None else min(r[0], nv)
                if nl is not None: r[1] = nl if r[1] is None else min(r[1], nl)
            r = req.get(id(ins))
            if r:
                if r[0] is not None: settle(vm, r[0])
                if r[1] is not None: settle(lg, r[1])
            if ins.kind == 'mfma': mf[0] += 1
            if ins.cnt == 'vm': vm.append(Dyn(ins, gen.get(ins.tag, 0)))
            elif ins.cnt == 'lgkm': lg.append(Dyn(ins, gen.get(ins.tag, 0)))
        def rewrite(items):
            out = []
            for it in items:
                if isinstance(it, tuple):
                    out.append(('loop', rewrite(it[1])))
                else:
                    r = req.get(id(it))
                    if r:
                        t = 's_waitcnt'
                        if r[0] is not None: t += f' vmcnt({r[0]})'
                        if r[1] is not None: t += f' lgkmcnt({r[1]})'
                        out.append(I(t))
                    out.append(it)
            return out
        self.items = rewrite(self.items); self.stack = [self.items]

    def pad_hazards(self, verbose=True):
        while True:
            seq = self._flatten(self.items, 2)
            fix = None
            for n, c in enumerate(seq):
                if c.kind in ('pseudo', 'wait', 'sopp', 'branch'): continue
                dist = 0
                for k in range(n - 1, max(-1, n - 24), -1):
                    p = seq[k]
                    w = need_states(p, c)
                    if w > dist:
                        fix = (c, w - dist, p); break
                    dist += p.states()
                    if dist >= 20: break
                if fix: break
            if not fix: break
            c, miss, p = fix
            if verbose: print(f'  hazard pad {miss}: [{p.text}] -> [{c.text}]')
            def ins(items):
                for j, it in enumerate(items):
                    if isinstance(it, tuple):
                        if ins(it[1]): return True
                    elif it is c:
                        items.insert(j, I(f's_nop {miss-1}')); return True
                return False
            assert ins(self.items)

    def text(self):
        return '\n'.join(('' if x.kind == 'pseudo' and not x.text.startswith(';') else '  ') + x.text for x in self._flatten(self.items, 1)) + '\n'

    def count(self):
        from collections import Counter
        return Counter(x.kind for x in self._flatten(self.items, 1))

def need_states(p, c):
    if p.kind in ('pseudo', 'wait', 'sopp', 'branch'): return 0
    pd = set(p.defs); cu = set(c.uses); cd = set(c.defs)
    vec = lambda s: {r for r in s if r[0] in 'va' and r[0] != 'vcc'}
    sc = lambda s: {r for r in s if r[0] in ('s', 'vcc')}
    w = 0
    if p.kind == 'mfma':
        big = 12 if p.passes == 8 else 8
        if c.kind == 'mfma':
            if pd & set(c.srcab): w = max(w, big)
            if pd & set(c.srcc) and not (p.defs == c.srcc and p.passes == c.passes): w = max(w, big - 2)
            if pd & cd and not (pd & set(c.srcc)): w = max(w, big)
        elif c.kind in ('valu', 'vmem', 'ds'):
            if pd & (cu | cd): w = max(w, big)
            if c.kind == 'valu' and set(p.srcc) & cd: w = max(w, 7 if p.passes == 8 else 3)
    if p.kind == 'valu':
        if c.kind == 'mfma' and vec(pd) & cu: w = max(w, 2)
        if c.kind == 'mfma' and ('exec', 0) in pd: w = max(w, 4)
        if c.kind == 'vmem' and sc(pd) & cu: w = max(w, 5)
        if c.kind == 'valu':
            if sc(pd) & cu: w = max(w, 4 if (c.rdlane or c.op.startswith('v_writelane')) else 2)
            if p.trans and not c.trans and pd & cu: w = max(w, 1)
            if p.trans and c.trans and pd & cu: w = max(w, 1)
            if (c.dpp or c.perml) and vec(pd) & cu: w = max(w, 2)
            if c.rdlane and vec(pd) & cu: w = max(w, 1)
            if p.sdwa and pd & (cu | cd): w = max(w, 1)
            if ('exec', 0) in pd and (c.dpp): w = max(w, 5)
            if ('exec', 0) in pd and (c.rdlane or c.perml): w = max(w, 4)
    if p.kind == 'salu':
        if ('m0', 0) in pd and ('m0', 0) in cu and c.kind in ('vmem', 'ds'): w = max(w, 1)
    if p.kind == 'vmem' and hasattr(p, 'store_data') and len(p.store_data) >= 3:
        if set(p.store_data) & cd: w = max(w, 2 if c.kind == 'valu' else 1)
    return w

def interleave(main, fillers, per_gap=2, start=0):
    out = []; f = list(fillers)
    for n, m in enumerate(main):
        out.append(m)
        if n >= start:
            for _ in range(per_gap):
                if f: out.append(f.pop(0))
    return out + f
```

```python
from asmlib import *
import struct

NAME = 'parallel_sum__ssm_conv_h3__mixer_gmlp__prompt'
WS_STATS = 0x0000000
WS_CSP   = 0x0010000
WS_URT   = 0x0100000
WS_YT    = 0x0500000
WS_Z2F   = 0x0900000
WS_Z1P   = 0x1000000
WS_PF    = 0x1800000
WS_Z2S   = 0x2000000
WS_SIZE  = 0x10000000

PTR = dict(q=36, k=38, v=40, shift=42, ssmk=44, D=46, bx=48, win=50, wsp=52, bsp=54, wout=56, out=58, dbg=60, ws=62)
SIZE = dict(q=4194304, k=4194304, v=4194304, shift=8192, ssmk=4194304, D=2048, bx=4194304, win=7340032,
            wsp=8388608, bsp=4096, wout=3670016, out=4194304, dbg=256, ws=WS_SIZE)

def f2u(x): return struct.unpack('<I', struct.pack('<f', x))[0]
def hx(x): return '0x%x' % (x & 0xffffffff)
GELU_C1 = -2.0 * 0.7978845608028654 * 1.4426950408889634
GELU_C2 = GELU_C1 * 0.044715

def head(P, label, nwg=256):
    P(f'.globl {label}\n.p2align 8\n.type {label},@function\n{label}:')
    P(f's_cmp_ge_u32 s2, {nwg}')
    P(f's_cbranch_scc1 {label}_end')
    P('s_load_dwordx16 s[36:51], s[0:1], 0')
    P('s_load_dwordx8 s[52:59], s[0:1], 64')
    P('s_load_dwordx4 s[60:63], s[0:1], 96')
    P('v_lshrrev_b32 v1, 6, v0')
    P('v_and_b32 v0, 63, v0')
    P('v_readfirstlane_b32 s3, v1')
    P('s_waitcnt lgkmcnt(0)')

def tail(P, label):
    P(f'{label}_end:')
    P('s_endpgm')

def srd(P, d, name):
    p = PTR[name]
    P(f's_mov_b32 s{d}, s{p}\ns_and_b32 s{d+1}, s{p+1}, 0xffff\ns_mov_b32 s{d+2}, {hx(SIZE[name])}\ns_mov_b32 s{d+3}, 0x20000')

def tilemap(P, srb, scb):
    P(f's_and_b32 s4, s2, 7\ns_lshr_b32 s5, s2, 3')
    P(f's_lshr_b32 s{srb}, s4, 1\ns_lshl_b32 s{srb}, s{srb}, 2\ns_lshr_b32 s6, s5, 3\ns_add_u32 s{srb}, s{srb}, s6')
    P(f's_and_b32 s{scb}, s4, 1\ns_lshl_b32 s{scb}, s{scb}, 3\ns_and_b32 s6, s5, 7\ns_add_u32 s{scb}, s{scb}, s6')

def desc(label, vgpr, accoff, sgpr=102):
    return (f'.amdhsa_kernel {label}\n  .amdhsa_next_free_vgpr {vgpr}\n  .amdhsa_next_free_sgpr {sgpr}\n'
            f'  .amdhsa_accum_offset {accoff}\n  .amdhsa_group_segment_fixed_size 0\n  .amdhsa_kernarg_size 112\n'
            f'  .amdhsa_user_sgpr_count 2\n  .amdhsa_user_sgpr_kernarg_segment_ptr 1\n'
            f'  .amdhsa_system_sgpr_workgroup_id_x 1\n.end_amdhsa_kernel\n')

def rowmap_lane(P, vd, vi, vt):
    P(f'v_lshrrev_b32 v{vt}, 2, v{vi}\nv_lshlrev_b32 v{vt}, 3, v{vt}\nv_and_b32 v{vd}, 3, v{vi}\nv_add_u32 v{vd}, v{vd}, v{vt}')

def gelu(x, t, vc2, sc1):
    return [f'v_mul_f32 v{t}, v{x}, v{x}',
            f'v_fma_f32 v{t}, v{t}, v{vc2}, s{sc1}',
            f'v_mul_f32 v{t}, v{t}, v{x}',
            f'v_exp_f32 v{t}, v{t}',
            f'v_add_f32 v{t}, 1.0, v{t}',
            f'v_rcp_f32 v{t}, v{t}',
            f'v_mul_f32 v{x}, v{x}, v{t}']

def zipstreams(streams):
    out = []; n = max(len(s) for s in streams)
    for i in range(n):
        for s in streams:
            if i < len(s): out.append(s[i])
    return out

def row_allreduce(P, regs):
    for ror in (8, 4, 2, 1):
        for r in regs:
            P(f'v_add_f32_dpp v{r}, v{r}, v{r} row_ror:{ror} row_mask:0xf bank_mask:0xf')

def bf16_round(P, v):
    P(f'v_cvt_pk_bf16_f32 v{v}, v{v}, v{v}\nv_lshlrev_b32 v{v}, 16, v{v}')

def ln_finish(P, vs, vq, n, vt):
    P(f'v_mul_f32 v{vs}, {hx(f2u(1.0/n))}, v{vs}')
    P(f'v_mul_f32 v{vt}, v{vs}, v{vs}')
    P(f'v_mul_f32 v{vq}, {hx(f2u(1.0/n))}, v{vq}')
    P(f'v_sub_f32 v{vq}, v{vq}, v{vt}')
    P(f'v_max_f32 v{vq}, 0, v{vq}')
    bf16_round(P, vs); bf16_round(P, vq)
    P(f'v_add_f32 v{vq}, {hx(f2u(1e-5))}, v{vq}')
    bf16_round(P, vq)
    P(f'v_sqrt_f32 v{vq}, v{vq}')
    bf16_round(P, vq)
    P(f'v_rcp_f32 v{vq}, v{vq}')
```

```python
from common import *
from sched import *

SLAB = 28672
XOFF = 3 * SLAB
MISC = XOFF + 65536
MF = 'v_mfma_f32_16x16x32_bf16'

def lane_ig(P):
    P('v_and_b32 v1, 15, v0\nv_lshrrev_b32 v2, 4, v0')

def rot_tables(P, srot, n, tabs):
    for k in range(n if n <= 8 else 8):
        P(f's_add_u32 s4, s{srot}, {k}\ns_and_b32 s4, s4, {n-1}')
        for first, mult, add in tabs:
            P(f's_mul_i32 s{first+k}, s4, {hx(mult)}')
            if add: P(f's_add_u32 s{first+k}, s{first+k}, {hx(add)}')

def priv_rows_setup(P, XV, XR, srow0, RS, sxm, off=XOFF, stride=16384):
    P(f's_mul_i32 s{sxm}, s3, {stride}\ns_add_u32 s{sxm}, s{sxm}, {off}')
    for jj in range(4):
        P(f'v_add_u32 v3, s{srow0}, v2\nv_add_u32 v3, {8*jj}, v3\nv_mul_u32_u24 v3, {RS}, v3')
        P(f'v_add_u32 v4, {4*jj}, v2\nv_xor_b32 v4, v4, v1\nv_lshlrev_b32 v4, 4, v4\nv_add_u32 v3, v3, v4')
        P(f'v_subrev_u32 v{XV+jj}, {1024*jj}, v3')
    if XR is not None:
        P('v_xor_b32 v3, v1, v2\nv_lshlrev_b32 v3, 4, v3\nv_lshlrev_b32 v4, 8, v1\nv_add_u32 v3, v3, v4')
        for ks in range(4):
            P(f'v_xor_b32 v4, {64*ks}, v3\nv_add_u32 v{XR+ks}, s{sxm}, v4')

def priv_dma(XV, srd, s0, s1, sxm, slot, tag):
    G = []
    for j in range(8):
        g = []
        if j % 4 == 0: g += grp(f's_add_u32 m0, s{sxm}, {8192*slot + 4096*(j//4)}')
        g += grp(f'buffer_load_dwordx4 v{XV + j%4}, s[{srd}:{srd+3}], s{s0 if j < 4 else s1} offen offset:{1024*(j%4)} lds', tag)
        G.append(g)
    return G

def priv_reads(XR, slot, abase, tag):
    return [(ks, grp(f'ds_read_b128 a[{abase + 8*ks + 4*mt}:{abase + 8*ks + 4*mt + 3}], v{XR+ks} offset:{8192*slot + 4096*mt}', tag))
            for ks in range(4) for mt in range(2)]

def gelu_q(a, t, c1, c2):
    L = []
    L += [f'v_mul_f32 v{t[e]}, v{a[e]}, v{a[e]}' for e in range(4)]
    L += [f'v_fma_f32 v{t[e]}, v{t[e]}, v{c2[e]}, v{c1[e]}' for e in range(4)]
    L += [f'v_mul_f32 v{t[e]}, v{t[e]}, v{a[e]}' for e in range(4)]
    L += [f'v_exp_f32 v{t[e]}, v{t[e]}' for e in range(4)]
    L += [f'v_add_f32 v{t[e]}, 1.0, v{t[e]}' for e in range(4)]
    L += [f'v_rcp_f32 v{t[e]}, v{t[e]}' for e in range(4)]
    L += [f'v_mul_f32 v{a[e]}, v{a[e]}, v{t[e]}' for e in range(4)]
    return L

def reduce16(S):
    L = []
    for k in range(8): L.append(f'v_add_f32_dpp v{S+k}, v{S+k}, v{S+k} row_ror:8 row_mask:0xf bank_mask:0x3')
    for k in range(8): L.append(f'v_add_f32_dpp v{S+k}, v{S+k+8}, v{S+k+8} row_ror:8 row_mask:0xf bank_mask:0xc')
    for k in range(4): L.append(f'v_add_f32_dpp v{S+k}, v{S+k}, v{S+k} row_half_mirror row_mask:0xf bank_mask:0x5')
    for k in range(4): L.append(f'v_add_f32_dpp v{S+k}, v{S+k+4}, v{S+k+4} row_half_mirror row_mask:0xf bank_mask:0xa')
    for qp in ('[1,0,3,2]', '[2,3,0,1]'):
        for k in range(4): L.append(f'v_add_f32_dpp v{S+k}, v{S+k}, v{S+k} quad_perm:{qp} row_mask:0xf bank_mask:0xf')
    return L

def emit(P, L):
    for x in grp(L): P.add(x)

def kb(label):
    P = Prog(); head(P, label)
    srd(P, 8, 'q'); srd(P, 12, 'win'); srd(P, 16, 'ws'); tilemap(P, 64, 65)
    ACC = [16, 72]; WF = [128, 156]; WV = 184; XV = 192; WR = 196; XR = 198
    RM, RA1, RA2, RR, CS1, SUM = 204, 212, 220, 4, 228, 236
    lane_ig(P)
    P('s_and_b32 s66, s65, 1')
    P('s_lshl_b32 s67, s64, 7\ns_lshl_b32 s68, s3, 5\ns_add_u32 s67, s67, s68')
    P('s_add_u32 s68, s64, s65')
    rot_tables(P, 68, 8, [(72, 917504, 0), (80, 256, 0), (88, 256, 8192)])
    priv_rows_setup(P, XV, XR, 67, 2048, 69)
    P('s_mul_i32 s70, s3, 7168')
    P('s_mul_i32 s4, s65, 224\ns_add_u32 s4, s4, 3584\ns_lshl_b32 s5, s3, 5\ns_lshl_b32 s6, s66, 1')
    for j in range(7):
        P(f'v_add_u32 v3, {64*j}, v0\nv_mul_u32_u24 v4, 4682, v3\nv_lshrrev_b32 v4, 16, v4')
        P(f'v_mul_u32_u24 v5, 14, v4\nv_sub_u32 v3, v3, v5\nv_add_u32 v3, s6, v3')
        P(f'v_subrev_u32 v5, 14, v3\nv_min_u32 v3, v3, v5\nv_lshlrev_b32 v3, 4, v3')
        P(f'v_and_b32 v5, 0x13, v4\nv_and_b32 v6, 4, v4\nv_lshl_or_b32 v5, v6, 1, v5\nv_bfe_u32 v6, v4, 3, 1\nv_lshl_or_b32 v5, v6, 2, v5')
        P(f'v_add_u32 v5, s5, v5\nv_mul_u32_u24 v5, 7168, v5\nv_add3_u32 v3, v3, v5, s4')
        P(f'v_subrev_u32 v{WV+j}, {1024*(j%4)}, v3')
    P('v_lshrrev_b32 v3, 5, v0\nv_lshlrev_b32 v3, 4, v3\nv_bfe_u32 v4, v0, 4, 1\nv_lshl_add_u32 v3, v4, 2, v3\nv_bfe_u32 v4, v0, 2, 2\nv_add_u32 v3, v3, v4')
    P(f'v_mul_u32_u24 v3, 224, v3\nv_and_b32 v4, 3, v0\nv_lshl_add_u32 v{WR}, v4, 3, v3\nv_add_u32 v{WR+1}, {2*SLAB}, v{WR}')

    def wdma(n):
        G = []
        for j in range(7):
            g = []
            if n == 8: g += grp(f'v_subrev_u32 v{WV+j}, 3584, v{WV+j}')
            if j % 4 == 0: g += grp(f's_add_u32 m0, s70, {SLAB*(n%3) + 4096*(j//4)}')
            g += grp(f'buffer_load_dwordx4 v{WV+j}, s[12:15], s{72 + n%8} offen offset:{1024*(j%4)} lds', f'W{n}')
            G.append(g)
        return G
    def xdma(n): return priv_dma(XV, 8, 80 + n, 88 + n, 69, n % 2, f'X{n}')
    def wreads(n, ks):
        b = WF[ks % 2]; sl = n % 3
        return [grp(f'ds_read_b64_tr_b16 v[{b+4*ft+2*h}:{b+4*ft+2*h+1}], v{WR + sl//2} offset:{SLAB*(sl%2) + (32*ks + 8*h)*224 + 32*ft}')
                for ft in range(7) for h in range(2)]
    for G in (xdma(0), wdma(0), xdma(1), wdma(1), wdma(2)): emit(P, G)
    P(f's_lshl_b32 s4, s67, 3\nv_lshlrev_b32 v3, 6, v2')
    for j in range(4): P(f'buffer_load_dwordx4 v[{ACC[1]+4*j}:{ACC[1]+4*j+3}], v3, s[16:19], s4 offen offset:{WS_STATS + 16*j}')
    rowmap_lane(P, 3, 1, 4)
    P('v_lshlrev_b32 v3, 3, v3')
    for mt in range(2): P(f'buffer_load_dwordx2 v[{252+2*mt}:{253+2*mt}], v3, s[16:19], s4 offen offset:{WS_STATS + 32*mt}')
    P(f's_mul_i32 s5, s65, 448\ns_add_u32 s5, s5, {WS_CSP}')
    P('v_lshlrev_b32 v3, 4, v0\nv_add_u32 v4, 7168, v3\nv_subrev_u32 v5, 448, v3\nv_cmp_gt_u32 vcc, 28, v0\nv_cndmask_b32 v4, v5, v4, vcc')
    for j in range(4):
        P(f'buffer_load_dwordx4 v[{ACC[1]+16+4*j}:{ACC[1]+19+4*j}], v4, s[16:19], s5 offen')
        if j < 3: P('s_add_u32 s5, s5, 14336')
    c = ACC[1] + 16
    for j in range(1, 4):
        for e in range(4): P(f'v_add_f32 v{c+e}, v{c+e}, v{c+4*j+e}')
    P(f's_lshl_b32 s5, s3, 10\ns_add_u32 s5, s5, {MISC}\nv_add_u32 v3, s5, v3')
    P(f'ds_write_b128 v3, v[{c}:{c+3}]', tag='cs')
    for r in range(8):
        m, rr = ACC[1] + 2*r, ACC[1] + 2*r + 1
        P(f'v_mov_b32 v{RM+r}, v{m}\nv_mul_f32 v{RA1+r}, {hx(f2u(GELU_C1))}, v{rr}\nv_mul_f32 v{RA2+r}, v{rr}, v{rr}')
        P(f'v_mul_f32 v{RA2+r}, v{RA2+r}, v{rr}\nv_mul_f32 v{RA2+r}, {hx(f2u(GELU_C2))}, v{RA2+r}')
    P(f's_lshl_b32 s6, s66, 6\ns_add_u32 s6, s6, s5\ns_cmp_eq_u32 s66, 1\ns_cselect_b32 s7, 0, 384\ns_add_u32 s7, s7, s5')
    P('v_lshlrev_b32 v3, 2, v1\nv_add_u32 v14, s6, v3\nv_add_u32 v15, s7, v3')
    P.need('cs')
    for ft in range(7): P(f'ds_read_b32 v{CS1+ft}, v{14 if ft < 6 else 15} offset:{64*ft if ft < 6 else 0}')
    P('v_lshlrev_b32 v3, 4, v2\nv_add_u32 v14, s6, v3\nv_add_u32 v15, s7, v3')
    for r in range(8): P(f'v_mov_b32 v{RR+r}, v{ACC[1]+2*r+1}')
    P.need('W0'); P('s_barrier'); P.need('X0')
    for ks, g in priv_reads(XR, 0, 0, 'xr0'): emit(P, g)
    for g in wreads(0, 0): emit(P, g)

    S = Sched()
    T = lambda n, ks=0: 56*n + 14*ks
    for n in range(16):
        ps = n // 8
        for ks in range(4):
            for ft in range(7):
                for mt in range(2):
                    a = ACC[ps] + 8*ft + 4*mt; x = f'a[{32*(n%8)+8*ks+4*mt}:{32*(n%8)+8*ks+4*mt+3}]'
                    w = f'v[{WF[ks%2]+4*ft}:{WF[ks%2]+4*ft+3}]'
                    c = '0' if n % 8 == 0 and ks == 0 else f'v[{a}:{a+3}]'
                    S.mfma(f'{MF} v[{a}:{a+3}], ' + (f'{x}, {w}' if ps == 0 else f'{w}, {x}') + f', {c}')
            n2, k2 = (n, ks + 1) if ks < 3 else (n + 1, 0)
            if n2 < 16:
                if k2 == 0:
                    S.add('rd', [need_i(f'W{n2}'), I('s_waitcnt lgkmcnt(0)'), I('s_barrier')], T(n, 3) - 1, T(n, 3))
                for q, g in enumerate(wreads(n2, k2)): S.add('rd', g, T(n, ks) - 1, T(n2, k2) + 2*(q//2))
        if n + 3 < 16:
            for g in wdma(n + 3): S.add('dma', g, T(n, 3), T(n + 1, 3))
        if n + 1 < 8:
            for q, (ks, g) in enumerate(priv_reads(XR, (n + 1) % 2, 32*(n + 1), f'xr{n+1}')):
                S.add('xr', ([need_i(f'X{n+1}')] if q == 0 else []) + g, T(n, 3), T(n + 1, ks))
        if n + 2 < 8:
            for q, g in enumerate(xdma(n + 2)): S.add('dma', ([need_i(f'xr{n}')] if q == 0 else []) + g, T(n, 1), T(n, 3))
    S.streams['dma'].sort(key=lambda e: e[1])
    tm = [12, 13, 3, 2]
    V = []
    for ft in range(7):
        for mt in range(2):
            a = [ACC[0] + 8*ft + 4*mt + r for r in range(4)]; rows = [4*mt + r for r in range(4)]
            V += [f'v_fma_f32 v{a[e]}, -v{RM+rows[e]}, v{CS1+ft}, v{a[e]}' for e in range(4)]
            V += gelu_q(a, tm, [RA1 + x for x in rows], [RA2 + x for x in rows])
            V += [f'v_mul_f32 v{a[e]}, v{a[e]}, v{RR+rows[e]}' for e in range(4)]
            if ft == 0:
                V += [f'v_mov_b32 v{SUM+2*rows[e]}, v{a[e]}' for e in range(4)]
                V += [f'v_mul_f32 v{SUM+2*rows[e]+1}, v{a[e]}, v{a[e]}' for e in range(4)]
            else:
                V += [f'v_add_f32 v{SUM+2*rows[e]}, v{SUM+2*rows[e]}, v{a[e]}' for e in range(4)]
                V += [f'v_fmac_f32 v{SUM+2*rows[e]+1}, v{a[e]}, v{a[e]}' for e in range(4)]
            d = ACC[0] + 8*ft + 2*mt
            V += [f'v_cvt_pk_bf16_f32 v{d}, v{a[0]}, v{a[1]}', f'v_cvt_pk_bf16_f32 v{d+1}, v{a[2]}, v{a[3]}']
    V += reduce16(SUM)
    for x in V: S.add('valu', x, T(8) + 8)
    emit(P, S.run(cap=lambda i: 2 if i < T(8) else 3))
    print(label, 'sched est cycles', S.est())
    P('v_lshrrev_b32 v2, 4, v0\nv_lshlrev_b32 v3, 4, v0')
    P(f's_lshl_b32 s4, s65, 6\ns_lshl_b32 s5, s64, 2\ns_add_u32 s4, s4, s5\ns_add_u32 s4, s4, s3\ns_mul_i32 s4, s4, 7168\ns_add_u32 s4, s4, {WS_Z2F}\ns_add_u32 s5, s4, 4096')
    for ft in range(7): P(f'buffer_store_dwordx4 v[{ACC[0]+8*ft}:{ACC[0]+8*ft+3}], v3, s[16:19], s{4 + ft//4} offen offset:{1024*(ft%4)}')
    P(f's_lshl_b32 s4, s64, 4\ns_add_u32 s4, s4, s65\ns_lshl_b32 s4, s4, 10\ns_lshl_b32 s5, s3, 8\ns_add_u32 s4, s4, s5\ns_add_u32 s4, s4, {WS_Z2S}')
    P('v_lshlrev_b32 v12, 2, v0')
    P('s_mov_b32 exec_lo, 0x11111111\ns_mov_b32 exec_hi, 0x11111111')
    P(f'buffer_store_dwordx4 v[{SUM}:{SUM+3}], v12, s[16:19], s4 offen')
    P('s_mov_b64 exec, -1')
    CS2 = WF[0]
    for ft in range(7): P(f'ds_read_b128 v[{CS2+4*ft}:{CS2+4*ft+3}], v{14 if ft < 6 else 15} offset:{448 + (64*ft if ft < 6 else 0)}')
    for mt in range(2):
        rr = 253 + 2*mt
        P(f'v_mul_f32 v{RA1+mt}, {hx(f2u(GELU_C1))}, v{rr}\nv_mul_f32 v{RA2+mt}, v{rr}, v{rr}')
        P(f'v_mul_f32 v{RA2+mt}, v{RA2+mt}, v{rr}\nv_mul_f32 v{RA2+mt}, {hx(f2u(GELU_C2))}, v{RA2+mt}')
    P(f's_lshl_b32 s4, s64, 4\ns_add_u32 s4, s4, s65\ns_lshl_b32 s4, s4, 2\ns_add_u32 s4, s4, s3\ns_mul_i32 s4, s4, 7168\ns_add_u32 s4, s4, {WS_Z1P}\ns_add_u32 s5, s4, 4096')
    for ft in range(7):
        for mt in range(2):
            a = [ACC[1] + 8*ft + 4*mt + r for r in range(4)]
            emit(P, [f'v_fma_f32 v{a[e]}, -v{252+2*mt}, v{CS2+4*ft+e}, v{a[e]}' for e in range(4)])
            emit(P, gelu_q(a, [4, 5, 6, 7], [RA1 + mt]*4, [RA2 + mt]*4))
            emit(P, [f'v_mul_f32 v{a[e]}, v{a[e]}, v{253+2*mt}' for e in range(4)])
            d = ACC[1] + 8*ft + 2*mt
            P(f'v_cvt_pk_bf16_f32 v{d}, v{a[0]}, v{a[1]}\nv_cvt_pk_bf16_f32 v{d+1}, v{a[2]}, v{a[3]}')
        P(f'buffer_store_dwordx4 v[{ACC[1]+8*ft}:{ACC[1]+8*ft+3}], v3, s[16:19], s{4 + ft//4} offen offset:{1024*(ft%4)}')
    tail(P, label)
    return P, dict(vgpr=512, acc=256, lds=MISC + 4096)

def ke(label):
    P = Prog(); head(P, label)
    srd(P, 8, 'wsp'); srd(P, 12, 'bsp'); srd(P, 16, 'ws'); tilemap(P, 64, 65)
    ACC = 16; ZF = [128, 156]; Z1 = 72; XV = 192; XR = 198; ZV = 184; ZR = 186
    lane_ig(P)
    P('s_and_b32 s66, s65, 1')
    P('s_lshl_b32 s67, s64, 7\ns_lshl_b32 s68, s3, 5\ns_add_u32 s67, s67, s68')
    P('s_add_u32 s68, s64, s65\ns_and_b32 s68, s68, 15')
    priv_rows_setup(P, XV, XR, 67, 4096, 69)
    P('s_mul_i32 s70, s3, 7168')
    P(f'v_lshlrev_b32 v{ZV}, 4, v0\nv_add_u32 v{ZV+1}, 4096, v{ZV}\nv_mov_b32 v{ZR}, v{ZV}\nv_add_u32 v{ZR+1}, {2*SLAB}, v{ZV}')
    P(f's_mul_i32 s71, s65, {16*SLAB}\ns_add_u32 s71, s71, s70\ns_add_u32 s71, s71, {WS_Z2F}')
    P('s_mov_b32 s72, s68\ns_mov_b32 s74, s68')
    def zdma(n):
        G = []
        for j in range(7):
            g = []
            if j == 0: g += grp(f's_mul_i32 s73, s72, {SLAB}\ns_add_u32 s73, s73, s71\ns_add_u32 s72, s72, 1\ns_and_b32 s72, s72, 15')
            if j % 4 == 0: g += grp(f's_add_u32 m0, s70, {SLAB*(n%3) + 4096*(j//4)}')
            g += grp(f'buffer_load_dwordx4 v{ZV + j//4}, s[16:19], s73 offen offset:{1024*(j%4)} lds', f'W{n}')
            G.append(g)
        return G
    def xdma(n):
        G = priv_dma(XV, 8, 75, 76, 69, n % 2, f'X{n}')
        G[0] = grp('s_lshl_b32 s75, s74, 8\ns_add_u32 s76, s75, 16384\ns_add_u32 s74, s74, 1\ns_and_b32 s74, s74, 15') + G[0]
        return G
    def zreads(n, ks):
        b = ZF[ks % 2]; sl = n % 3
        return [grp(f'ds_read_b128 v[{b+4*ft}:{b+4*ft+3}], v{ZR + sl//2} offset:{SLAB*(sl%2) + 7168*ks + 1024*ft}') for ft in range(7)]
    for G in (xdma(0), zdma(0), xdma(1), zdma(1), zdma(2)): emit(P, G)
    P(f's_lshl_b32 s4, s64, 4\ns_add_u32 s4, s4, s65\ns_lshl_b32 s4, s4, 2\ns_add_u32 s4, s4, s3\ns_mul_i32 s4, s4, 7168\ns_add_u32 s4, s4, {WS_Z1P}')
    for ft in range(7): P(f'buffer_load_dwordx4 v[{Z1+4*ft}:{Z1+4*ft+3}], v{ZV + ft//4}, s[16:19], s4 offen offset:{1024*(ft%4)}')
    rowmap_lane(P, 3, 1, 4)
    P('v_add_u32 v3, s67, v3\nv_lshlrev_b32 v3, 1, v3')
    for mt in range(2): P(f'buffer_load_ushort v{204+mt}, v3, s[12:15], 0 offen offset:{8*mt}')
    P.need('W0'); P('s_barrier'); P.need('X0')
    for ks, g in priv_reads(XR, 0, 0, 'xr0'): emit(P, g)
    for g in zreads(0, 0): emit(P, g)
    S = Sched()
    T = lambda n, ks=0: 56*n + 14*ks
    for n in range(16):
        for ks in range(4):
            for ft in range(7):
                for mt in range(2):
                    a = ACC + 8*ft + 4*mt; x = f'a[{32*(n%8)+8*ks+4*mt}:{32*(n%8)+8*ks+4*mt+3}]'
                    w = f'v[{ZF[ks%2]+4*ft}:{ZF[ks%2]+4*ft+3}]'
                    c = '0' if n == 0 and ks == 0 else f'v[{a}:{a+3}]'
                    S.mfma(f'{MF} v[{a}:{a+3}], {w}, {x}, {c}')
            n2, k2 = (n, ks + 1) if ks < 3 else (n + 1, 0)
            if n2 < 16:
                if k2 == 0:
                    S.add('rd', [need_i(f'W{n2}'), I('s_waitcnt lgkmcnt(0)'), I('s_barrier')], T(n, 3) - 1, T(n, 3))
                for q, g in enumerate(zreads(n2, k2)): S.add('rd', g, T(n, ks) - 1, T(n2, k2) + 2*q)
        if n + 3 < 16:
            for g in zdma(n + 3): S.add('dma', g, T(n, 3), T(n + 1, 3))
        if n + 1 < 16:
            for q, (ks, g) in enumerate(priv_reads(XR, (n + 1) % 2, 32*((n + 1) % 8), f'xr{n+1}')):
                S.add('xr', ([need_i(f'X{n+1}')] if q == 0 else []) + g, T(n, 3), T(n + 1, ks))
        if n + 2 < 16:
            for q, g in enumerate(xdma(n + 2)): S.add('dma', ([need_i(f'xr{n}')] if q == 0 else []) + g, T(n, 1), T(n, 3))
    S.streams['dma'].sort(key=lambda e: e[1])
    emit(P, S.run(cap=2))
    print(label, 'sched est cycles', S.est())
    P('v_lshlrev_b32 v204, 16, v204\nv_lshlrev_b32 v205, 16, v205')
    P('s_lshl_b32 s4, s64, 1\ns_lshr_b32 s5, s3, 1\ns_add_u32 s4, s4, s5\ns_mul_i32 s4, s4, 56')
    P('s_lshr_b32 s5, s65, 1\ns_mul_i32 s5, s5, 7\ns_add_u32 s4, s4, s5\ns_lshl_b32 s4, s4, 12')
    P(f's_and_b32 s5, s3, 1\ns_lshl_b32 s5, s5, 11\ns_add_u32 s4, s4, s5\ns_add_u32 s4, s4, {WS_PF}')
    P('s_add_u32 s7, s4, 12288\ns_lshl_b32 s5, s66, 14\ns_add_u32 s4, s4, s5')
    P(f's_lshl_b32 s5, s66, 3\nv_add_u32 v12, s5, v{ZV}')
    OUT = ZF[0]
    for ft in range(7):
        for mt in range(2):
            a = [ACC + 8*ft + 4*mt + r for r in range(4)]; z = Z1 + 4*ft + 2*mt
            P(f'v_lshlrev_b32 v4, 16, v{z}\nv_and_b32 v5, 0xffff0000, v{z}\nv_lshlrev_b32 v6, 16, v{z+1}\nv_and_b32 v7, 0xffff0000, v{z+1}')
            emit(P, [f'v_add_f32 v{a[e]}, v{a[e]}, v{204+mt}' for e in range(4)])
            emit(P, [f'v_mul_f32 v{a[e]}, v{a[e]}, v{4+e}' for e in range(4)])
            d = OUT + 8*(ft//2) + 4*mt + 2*(ft % 2)
            P(f'v_cvt_pk_bf16_f32 v{d}, v{a[0]}, v{a[1]}\nv_cvt_pk_bf16_f32 v{d+1}, v{a[2]}, v{a[3]}')
        if ft % 2 == 1:
            for mt in range(2):
                d = OUT + 8*(ft//2) + 4*mt
                P(f'buffer_store_dwordx4 v[{d}:{d+3}], v{ZV}, s[16:19], s4 offen offset:{1024*mt}')
            P('s_add_u32 s4, s4, 4096')
        if ft == 6:
            for mt in range(2):
                d = OUT + 24 + 4*mt
                P(f'buffer_store_dwordx2 v[{d}:{d+1}], v12, s[16:19], s7 offen offset:{1024*mt}')
    tail(P, label)
    return P, dict(vgpr=512, acc=256, lds=MISC)

F_RING, F_STG, F_EX, F_EY = 0, 65536, 131072, 147456
def kf(label):
    P = Prog(); head(P, label)
    srd(P, 8, 'wout'); srd(P, 12, 'q'); srd(P, 16, 'ws'); srd(P, 20, 'out')
    ACC = 16; PFR = [64, 80]; XV = 96; XR = 100; PV = 102; EV = 104; ST = 108
    lane_ig(P)
    P('s_and_b32 s4, s2, 7\ns_lshr_b32 s5, s2, 3')
    P('s_lshr_b32 s64, s4, 1\ns_lshl_b32 s64, s64, 3\ns_lshr_b32 s6, s5, 2\ns_add_u32 s64, s64, s6')
    P('s_and_b32 s65, s4, 1\ns_lshl_b32 s65, s65, 2\ns_and_b32 s6, s5, 3\ns_add_u32 s65, s65, s6')
    P('s_lshl_b32 s66, s65, 8\ns_lshl_b32 s6, s3, 6\ns_add_u32 s66, s66, s6')
    P('s_add_u32 s68, s64, s65\ns_cmp_ge_u32 s68, 28\ns_cselect_b32 s6, 28, 0\ns_sub_u32 s68, s68, s6\ns_cmp_ge_u32 s68, 14\ns_cselect_b32 s6, 14, 0\ns_sub_u32 s68, s68, s6')
    P('v_lshrrev_b32 v3, 2, v0\nv_lshlrev_b32 v3, 11, v3\nv_and_b32 v4, 3, v0\nv_bfe_u32 v5, v0, 4, 1\nv_lshlrev_b32 v5, 1, v5\nv_xor_b32 v5, v4, v5')
    P('v_lshlrev_b32 v5, 4, v5\nv_add3_u32 v5, v3, v5, s66\nv_lshlrev_b32 v4, 4, v4\nv_add3_u32 v4, v3, v4, s66')
    for j in range(4):
        P(f'v_add_u32 v{XV+j}, {31744*j}, v5\nv_add_u32 v{EV+j}, {31744*j}, v4')
    P(f's_lshl_b32 s69, s3, 14\ns_add_u32 s69, s69, {F_STG}')
    P('v_lshlrev_b32 v3, 2, v2\nv_bfe_u32 v4, v0, 2, 2\nv_add_u32 v3, v3, v4\nv_lshlrev_b32 v3, 6, v3\nv_and_b32 v4, 3, v0\nv_lshl_add_u32 v3, v4, 3, v3')
    P(f'v_and_b32 v4, 1, v2\nv_lshl_add_u32 v3, v4, 5, v3\nv_add_u32 v{XR}, s69, v3\nv_xor_b32 v3, 32, v3\nv_add_u32 v{XR+1}, s69, v3')
    P(f'v_lshlrev_b32 v{PV}, 4, v0')
    P(f's_lshl_b32 s70, s3, 12\ns_mul_i32 s71, s64, {56*4096}\ns_add_u32 s71, s71, s70\ns_add_u32 s71, s71, {WS_PF}')
    P('s_mov_b32 s72, s68\ns_mov_b32 s74, s68')
    def nxt(s): return f's_add_u32 s{s}, s{s}, 1\ns_cmp_eq_u32 s{s}, 14\ns_cselect_b32 s{s}, 0, s{s}'
    def pdma(n):
        G = []
        for j in range(4):
            g = []
            if j == 0: g += grp(f's_lshl_b32 s73, s72, 14\ns_add_u32 s73, s73, s71\n' + nxt(72) + f'\ns_add_u32 m0, s70, {F_RING + 16384*(n%4)}')
            g += grp(f'buffer_load_dwordx4 v{PV}, s[16:19], s73 offen offset:{1024*j} lds', f'W{n}')
            G.append(g)
        return G
    def xdma(n):
        G = priv_dma(XV, 8, 75, 76, 69, n % 2, f'X{n}')
        G[0] = grp('s_lshl_b32 s75, s74, 18\ns_add_u32 s76, s75, 0x20000\n' + nxt(74)) + G[0]
        return G
    def xreads(n):
        return [(ks, grp(f'ds_read_b64_tr_b16 a[{32*(n%8)+8*ks+4*dt+2*h}:{32*(n%8)+8*ks+4*dt+2*h+1}], v{XR+dt} offset:{8192*(n%2) + (32*ks + 16*h)*64}', f'xr{n}'))
                for ks in range(4) for dt in range(2) for h in range(2)]
    def preads(n, ks):
        b = PFR[ks % 2]
        return [grp(f'ds_read_b128 v[{b+4*q}:{b+4*q+3}], v{PV} offset:{F_RING + 16384*(n%4) + 4096*ks + 1024*q}') for q in range(4)]
    for G in (xdma(0), pdma(0), xdma(1), pdma(1), pdma(2), pdma(3)): emit(P, G)
    P(f's_lshl_b32 s77, s64, 17\ns_add_u32 m0, s70, {F_EX}')
    for j in range(4): P(f'buffer_load_dwordx4 v{EV+j}, s[12:15], s77 offen offset:{1024*j} lds', tag='ex')
    P('v_lshrrev_b32 v3, 3, v0\nv_lshlrev_b32 v3, 12, v3\nv_and_b32 v4, 7, v0\nv_lshl_add_u32 v3, v4, 4, v3')
    P(f's_lshl_b32 s4, s66, 11\ns_lshl_b32 s5, s64, 7\ns_add_u32 s4, s4, s5\ns_add_u32 s4, s4, {WS_YT}\ns_add_u32 m0, s70, {F_EY}')
    for j in range(4):
        P(f'buffer_load_dwordx4 v3, s[16:19], s4 offen offset:{1024*j} lds', tag='ex')
        if j < 3: P('v_add_u32 v3, 31744, v3')
    rowmap_lane(P, 6, 1, 4)
    P('v_lshlrev_b32 v3, 3, v6\ns_lshl_b32 s4, s64, 9')
    for q in range(4): P(f'buffer_load_dwordx2 v[{ST+2*q}:{ST+2*q+1}], v3, s[16:19], s4 offen offset:{WS_STATS + 256*(q//2) + 32*(q%2)}')
    P.need('W0'); P('s_barrier'); P.need('X0')
    for ks, g in xreads(0): emit(P, g)
    for g in preads(0, 0): emit(P, g)
    S = Sched()
    T = lambda n, ks=0: 32*n + 8*ks
    for n in range(14):
        for ks in range(4):
            for q in range(4):
                for dt in range(2):
                    a = ACC + 8*q + 4*dt; x = f'a[{32*(n%8)+8*ks+4*dt}:{32*(n%8)+8*ks+4*dt+3}]'
                    p = f'v[{PFR[ks%2]+4*q}:{PFR[ks%2]+4*q+3}]'
                    c = '0' if n == 0 and ks == 0 else f'v[{a}:{a+3}]'
                    S.mfma(f'{MF} v[{a}:{a+3}], {x}, {p}, {c}')
            n2, k2 = (n, ks + 1) if ks < 3 else (n + 1, 0)
            if n2 < 14:
                if k2 == 0:
                    S.add('rd', [need_i(f'W{n2}'), I('s_waitcnt lgkmcnt(0)'), I('s_barrier')], T(n, 3) - 1, T(n, 3))
                for q, g in enumerate(preads(n2, k2)): S.add('rd', g, T(n, ks) - 1, T(n2, k2) + 2*q)
        if n + 4 < 14:
            for g in pdma(n + 4): S.add('dma', g, T(n, 3), T(n + 1, 3))
        if n + 1 < 14:
            for q, (ks, g) in enumerate(xreads(n + 1)):
                S.add('xr', ([need_i(f'X{n+1}')] if q == 0 else []) + g, T(n, 2), T(n + 1, 0) + 2*ks)
        if n + 2 < 14:
            for q, g in enumerate(xdma(n + 2)): S.add('dma', ([need_i(f'xr{n}')] if q == 0 else []) + g, T(n, 1), T(n, 3))
    S.streams['dma'].sort(key=lambda e: e[1])
    emit(P, S.run(cap=2))
    print(label, 'sched est cycles', S.est())
    P(f'v_lshlrev_b32 v7, 6, v6\nv_lshl_add_u32 v7, v2, 3, v7\ns_add_u32 s4, s70, {F_EX}\nv_add_u32 v7, s4, v7')
    P('v_lshlrev_b32 v8, 2, v2\nv_bfe_u32 v9, v0, 2, 2\nv_add_u32 v8, v8, v9\nv_lshlrev_b32 v8, 7, v8\nv_and_b32 v9, 3, v0\nv_lshl_add_u32 v8, v9, 4, v8')
    P(f's_add_u32 s4, s70, {F_EY}\nv_add_u32 v8, s4, v8')
    P.need('ex')
    XB, YB = 128, 144
    for q in range(4):
        for dt in range(2):
            k = 2*q + dt
            P(f'ds_read_b64 v[{XB+2*k}:{XB+2*k+1}], v7 offset:{2048*(q//2) + 256*(q%2) + 32*dt}')
            P(f'ds_read_b64_tr_b16 v[{YB+2*k}:{YB+2*k+1}], v8 offset:{2048*dt + 64*(q//2) + 8*(q%2)}')
    for q in range(4): P(f'v_mul_f32 v{ST+2*q}, v{ST+2*q}, v{ST+2*q+1}')
    for q in range(4):
        for dt in range(2):
            k = 2*q + dt; a = ACC + 8*q + 4*dt; xb = XB + 2*k; yb = YB + 2*k
            P(f'v_lshlrev_b32 v10, 16, v{xb}\nv_and_b32 v11, 0xffff0000, v{xb}\nv_lshlrev_b32 v12, 16, v{xb+1}\nv_and_b32 v13, 0xffff0000, v{xb+1}')
            P(f'v_lshlrev_b32 v48, 16, v{yb}\nv_and_b32 v49, 0xffff0000, v{yb}\nv_lshlrev_b32 v50, 16, v{yb+1}\nv_and_b32 v51, 0xffff0000, v{yb+1}')
            emit(P, [f'v_add_f32 v{a+e}, v{a+e}, v{10+e}' for e in range(4)])
            emit(P, [f'v_fma_f32 v{10+e}, v{10+e}, v{ST+2*q+1}, -v{ST+2*q}' for e in range(4)])
            emit(P, [f'v_fmac_f32 v{a+e}, v{10+e}, v{48+e}' for e in range(4)])
            P(f'v_cvt_pk_bf16_f32 v{a}, v{a}, v{a+1}\nv_cvt_pk_bf16_f32 v{a+1}, v{a+2}, v{a+3}')
            P(f'ds_write_b64 v7, v[{a}:{a+1}] offset:{2048*(q//2) + 256*(q%2) + 32*dt}', tag='ob')
    P(f's_add_u32 s4, s70, {F_EX}\nv_add_u32 v7, s4, v{PV}')
    P.need('ob')
    for j in range(4): P(f'ds_read_b128 v[{XB+4*j}:{XB+4*j+3}], v7 offset:{1024*j}')
    for j in range(4): P(f'buffer_store_dwordx4 v[{XB+4*j}:{XB+4*j+3}], v{EV+j}, s[20:23], s77 offen offset:{1024*j}')
    tail(P, label)
    return P, dict(vgpr=512, acc=256, lds=163840)
```

```python
from common import *

def ka(label):
    P = Prog(); head(P, label)
    srd(P, 8, 'q'); srd(P, 12, 'win'); srd(P, 16, 'ws'); srd(P, 20, 'k'); srd(P, 24, 'v'); srd(P, 28, 'shift')
    KB, VB, BN = 0, 17408, 33792
    CS = BN + 16384
    P('s_lshr_b32 s64, s2, 4\ns_and_b32 s65, s2, 15')
    P('v_lshrrev_b32 v2, 3, v0\nv_and_b32 v3, 7, v0\nv_lshlrev_b32 v3, 4, v3')
    P('s_lshl_b32 s66, s64, 7\ns_lshl_b32 s67, s3, 3\ns_add_u32 s66, s66, s67')
    P('v_add_u32 v2, s66, v2\nv_lshlrev_b32 v2, 11, v2\nv_add_u32 v2, v2, v3')
    P('s_lshl_b32 s67, s65, 7\nv_add_u32 v4, s67, v2')
    P('v_subrev_u32 v5, 8192, v4')
    P('s_lshl_b32 s68, s3, 10')
    for j in range(5):
        if j == 4:
            P(f's_cmp_lg_u32 s3, 0\ns_cbranch_scc1 {label}_skipk')
        P(f's_add_u32 m0, s68, {KB + 4096*j}')
        P('s_nop 0')
        P('buffer_load_dwordx4 v5, s[20:23], 0 offen lds', tag='kv')
        if j == 4: P(f'{label}_skipk:')
        else: P('v_add_u32 v5, 0x10000, v5')
    for j in range(4):
        P(f's_add_u32 m0, s68, {VB + 4096*j}')
        P('s_nop 0')
        P('buffer_load_dwordx4 v4, s[24:27], 0 offen lds', tag='kv')
        P('v_add_u32 v4, 0x10000, v4')
    P('v_and_b32 v6, 15, v0\ns_lshl_b32 s69, s65, 6\ns_lshl_b32 s70, s3, 4\ns_add_u32 s69, s69, s70')
    P('v_add_u32 v7, s69, v6\nv_lshlrev_b32 v7, 3, v7')
    P('buffer_load_dwordx2 v[8:9], v7, s[28:31], 0 offen')
    P('s_lshl_b32 s71, s2, 3\ns_lshl_b32 s72, s3, 1\ns_add_u32 s71, s71, s72\ns_lshl_b32 s72, s71, 11')
    P('v_lshlrev_b32 v10, 4, v0')
    for j in range(4):
        P(f'buffer_load_dwordx4 v[{16+4*j}:{19+4*j}], v10, s[8:11], s72 offen offset:{1024*j}')
    P('s_mul_i32 s73, s2, 1171\ns_lshr_b32 s73, s73, 16')
    P('s_mul_i32 s74, s73, 56\ns_sub_u32 s74, s2, s74')
    P('s_lshl_b32 s75, s73, 8\ns_lshl_b32 s76, s3, 6\ns_add_u32 s75, s75, s76')
    P('v_lshrrev_b32 v11, 3, v0\nv_add_u32 v11, s75, v11\ns_movk_i32 s76, 7168\nv_mul_lo_u32 v11, v11, s76')
    P('s_lshl_b32 s76, s74, 7\nv_add_u32 v11, s76, v11\nv_add_u32 v11, v11, v3')
    for j in range(8):
        P(f'buffer_load_dwordx4 v[{32+4*j}:{35+4*j}], v11, s[12:15], 0 offen')
        P('v_add_u32 v11, 57344, v11')
    for rr in range(2):
        s, q = 64 + 2*rr, 65 + 2*rr
        P(f'v_mov_b32 v{s}, 0\nv_mov_b32 v{q}, 0')
        for j in range(8):
            r = 16 + 8*rr + j
            P(f'v_lshlrev_b32 v70, 16, v{r}\nv_and_b32 v71, 0xffff0000, v{r}')
            P(f'v_add_f32 v{s}, v{s}, v70\nv_fmac_f32 v{q}, v70, v70\nv_add_f32 v{s}, v{s}, v71\nv_fmac_f32 v{q}, v71, v71')
    row_allreduce(P, [64, 65, 66, 67])
    for r in (64, 65, 66, 67):
        P(f'v_add_f32_dpp v{r}, v{r}, v{r} row_bcast:15 row_mask:0xa bank_mask:0xf')
    for r in (64, 65, 66, 67):
        P(f'v_add_f32_dpp v{r}, v{r}, v{r} row_bcast:31 row_mask:0xc bank_mask:0xf')
    ln_finish(P, 64, 65, 1024, 70); ln_finish(P, 66, 67, 1024, 70)
    P('s_lshl_b32 s72, s71, 3\nv_mov_b32 v70, s72')
    P('s_mov_b32 exec_lo, 0\ns_mov_b32 exec_hi, 0x80000000')
    P(f'buffer_store_dwordx4 v[64:67], v70, s[16:19], 0 offen offset:{WS_STATS}')
    P('s_mov_b64 exec, -1')
    for c in range(8): P(f'v_mov_b32 v{72+c}, 0')
    for j in range(8):
        for w in range(4):
            r = 32 + 4*j + w
            P(f'v_lshlrev_b32 v70, 16, v{r}\nv_and_b32 v71, 0xffff0000, v{r}')
            P(f'v_add_f32 v{72+2*w}, v{72+2*w}, v70\nv_add_f32 v{73+2*w}, v{73+2*w}, v71')
    P(f'v_lshlrev_b32 v70, 5, v0\ns_lshl_b32 s76, s3, 11\nv_add_u32 v70, s76, v70')
    P(f'ds_write_b128 v70, v[72:75] offset:{CS}\nds_write_b128 v70, v[76:79] offset:{CS+16}')
    P('s_waitcnt vmcnt(0) lgkmcnt(0)\ns_barrier')
    P(f's_cmp_lg_u32 s3, 0\ns_cbranch_scc1 {label}_nocs\ns_cmp_ge_u32 s2, 224\ns_cbranch_scc1 {label}_nocs')
    P('v_lshlrev_b32 v70, 2, v0')
    for j in range(32): P(f'ds_read_b32 v{32+j}, v70 offset:{CS+256*j}')
    for j in range(1, 32): P(f'v_add_f32 v32, v32, v{32+j}')
    P(f's_mul_i32 s76, s73, 14336\ns_lshl_b32 s77, s74, 8\ns_add_u32 s76, s76, s77\ns_add_u32 s76, s76, {WS_CSP}')
    P('buffer_store_dword v32, v70, s[16:19], s76 offen')
    P(f'{label}_nocs:')
    P('v_lshlrev_b32 v12, 16, v8\nv_and_b32 v13, 0xffff0000, v8\nv_lshlrev_b32 v14, 16, v9\nv_and_b32 v15, 0xffff0000, v9')
    P('v_lshrrev_b32 v70, 4, v0\nv_lshlrev_b32 v70, 3, v70\nv_bfe_u32 v71, v0, 2, 2\nv_add_u32 v70, v70, v71\nv_lshlrev_b32 v70, 7, v70')
    P('v_and_b32 v71, 3, v0\nv_lshlrev_b32 v71, 3, v71\nv_add_u32 v70, v70, v71\ns_lshl_b32 s76, s3, 5\nv_add_u32 v70, s76, v70')
    P(f'v_lshlrev_b32 v71, 8, v6\nv_lshrrev_b32 v72, 4, v0\nv_lshlrev_b32 v72, 4, v72\nv_sub_u32 v71, v71, v72')
    P(f's_lshl_b32 s76, s3, 12\ns_add_u32 s76, s76, {BN + 240 - 192}\nv_add_u32 v71, s76, v71')
    for j in range(4):
        kr, vr = 16, 22
        for t in range(3): P(f'ds_read_b64_tr_b16 v[{kr+2*t}:{kr+2*t+1}], v70 offset:{KB + (32*j + 4*t)*128}')
        for t in range(2): P(f'ds_read_b64_tr_b16 v[{vr+2*t}:{vr+2*t+1}], v70 offset:{VB + (32*j + 4*t)*128}')
        for e in range(1, 12):
            src = kr + e//2
            P(f'v_lshlrev_b32 v{32+e}, 16, v{src}' if e % 2 == 0 else f'v_and_b32 v{32+e}, 0xffff0000, v{src}')
        for e in range(8):
            src = vr + e//2
            P(f'v_lshlrev_b32 v{48+e}, 16, v{src}' if e % 2 == 0 else f'v_and_b32 v{48+e}, 0xffff0000, v{src}')
        for e in range(8): P(f'v_mul_f32 v{56+e}, v{32+e+1}, v15')
        for e in range(8): P(f'v_fmac_f32 v{56+e}, v{32+e+2}, v14')
        for e in range(8): P(f'v_fmac_f32 v{56+e}, v{32+e+3}, v13')
        for e in range(8): P(f'v_fmac_f32 v{56+e}, v{32+e+4}, v12')
        for e in range(8): P(f'v_mul_f32 v{56+e}, v{56+e}, v{48+e}')
        for d in range(4): P(f'v_cvt_pk_bf16_f32 v{64+d}, v{56+7-2*d}, v{56+6-2*d}')
        P(f'ds_write_b128 v71, v[64:67] offset:{192 - 64*j}', tag='bn')
    P.need('bn')
    P(f'v_lshlrev_b32 v72, 4, v0\ns_lshl_b32 s76, s3, 12\nv_add_u32 v72, s76, v72')
    for j in range(4): P(f'ds_read_b128 v[{16+4*j}:{19+4*j}], v72 offset:{BN + 1024*j}')
    P('v_lshrrev_b32 v73, 4, v0\nv_add_u32 v73, s69, v73\nv_lshlrev_b32 v73, 12, v73\nv_lshlrev_b32 v74, 4, v6\nv_add_u32 v73, v73, v74')
    P(f's_lshl_b32 s76, s64, 8\ns_sub_u32 s76, {WS_URT + 3840}, s76')
    for j in range(4):
        P(f'buffer_store_dwordx4 v[{16+4*j}:{19+4*j}], v73, s[16:19], s76 offen')
        if j < 3: P('v_add_u32 v73, 0x4000, v73')
    tail(P, label)
    return P, dict(vgpr=128, acc=128, lds=CS + 8192)

def z2_norm_consts(P, base):
    row_allreduce(P, list(range(base, base + 16)))
    for r in range(8): ln_finish(P, base + 2*r, base + 2*r + 1, 1792, base + 16)

def kc(label):
    P = Prog(); head(P, label); srd(P, 16, 'ws'); tilemap(P, 64, 65)
    P('v_and_b32 v2, 15, v0\nv_lshrrev_b32 v3, 4, v0\nv_lshlrev_b32 v4, 10, v2\nv_lshlrev_b32 v5, 6, v3\nv_add_u32 v4, v4, v5')
    P(f's_lshl_b32 s66, s64, 14\ns_lshl_b32 s67, s3, 8\ns_add_u32 s66, s66, s67\ns_add_u32 s66, s66, {WS_Z2S}')
    for j in range(4): P(f'buffer_load_dwordx4 v[{16+4*j}:{19+4*j}], v4, s[16:19], s66 offen offset:{16*j}')
    P(f's_lshl_b32 s67, s65, 6\ns_lshl_b32 s68, s64, 2\ns_add_u32 s67, s67, s68\ns_add_u32 s67, s67, s3\ns_mul_i32 s67, s67, 7168\ns_add_u32 s67, s67, {WS_Z2F}')
    P('s_add_u32 s68, s67, 4096\nv_lshlrev_b32 v6, 4, v0')
    for ft in range(7):
        P(f'buffer_load_dwordx4 v[{40+4*ft}:{43+4*ft}], v6, s[16:19], s{67 + ft//4} offen offset:{1024*(ft%4)}')
    z2_norm_consts(P, 16)
    for r in range(8): P(f'v_mul_f32 v{16+2*r}, v{16+2*r}, v{17+2*r}')
    for ft in range(7):
        for d in range(4):
            r = 40 + 4*ft + d
            P(f'v_lshlrev_b32 v70, 16, v{r}\nv_and_b32 v71, 0xffff0000, v{r}')
            P(f'v_fma_f32 v70, v70, v{17+4*d}, -v{16+4*d}\nv_fma_f32 v71, v71, v{19+4*d}, -v{18+4*d}')
            P(f'v_cvt_pk_bf16_f32 v{r}, v70, v71')
        P(f'buffer_store_dwordx4 v[{40+4*ft}:{43+4*ft}], v6, s[16:19], s{67 + ft//4} offen offset:{1024*(ft%4)}')
    tail(P, label)
    return P, dict(vgpr=128, acc=128, lds=0)

CV_H, CV_U0, CV_U1, CV_STRIDE = 0, 4608, 8768, 12928

def kd(label):
    P = Prog(); head(P, label); srd(P, 8, 'ssmk'); srd(P, 12, 'D'); srd(P, 16, 'ws')
    P(f's_lshl_b32 s64, s2, 2\ns_add_u32 s64, s64, s3\ns_lshl_b32 s65, s64, 12\ns_add_u32 s66, s65, {WS_URT}')
    P(f's_mul_i32 s67, s3, {CV_STRIDE}')
    P('v_lshlrev_b32 v2, 4, v0')
    P(f's_add_u32 m0, s67, {CV_H + 480}\ns_nop 0')
    for j in range(4): P(f'buffer_load_dwordx4 v2, s[8:11], s65 offen offset:{1024*j} lds', tag='cv')
    P(f's_add_u32 m0, s67, {CV_U0}\ns_nop 0')
    for j in range(4): P(f'buffer_load_dwordx4 v2, s[16:19], s66 offen offset:{1024*j} lds', tag='cv')
    P('s_lshl_b32 s68, s64, 1\nv_mov_b32 v3, s68\nbuffer_load_ushort v4, v3, s[12:15], 0 offen')
    P('v_add_u32 v5, s67, v2')
    P('v_mov_b32 v8, 0\nv_mov_b32 v9, 0\nv_mov_b32 v10, 0\nv_mov_b32 v11, 0')
    P('s_mov_b64 exec, 0x3fffffff')
    P(f'ds_write_b128 v5, v[8:11] offset:{CV_H}', tag='z')
    P('s_mov_b64 exec, 0xf')
    P(f'ds_write_b128 v5, v[8:11] offset:{CV_U0 + 4096}', tag='z')
    P(f'ds_write_b128 v5, v[8:11] offset:{CV_U1 + 4096}', tag='z')
    P('s_mov_b64 exec, -1')
    P.need('cv', 'z')
    for j in range(4):
        P(f'ds_read_b128 v[{16+8*j}:{19+8*j}], v5 offset:{CV_U0 + 1024*j}')
        P(f'ds_read_b32 v{20+8*j}, v5 offset:{CV_U0 + 1024*j + 16}')
    for j in range(4):
        for d in range(4): P(f'v_alignbit_b32 v{16+8*j+d}, v{17+8*j+d}, v{16+8*j+d}, 16')
        P(f'ds_write_b128 v5, v[{16+8*j}:{19+8*j}] offset:{CV_U1 + 1024*j}', tag='u1')
    P('v_and_b32 v6, 15, v0\nv_lshrrev_b32 v7, 4, v0')
    P(f'v_sub_u32 v12, 1807, v6\nv_lshrrev_b32 v12, 1, v12\nv_lshlrev_b32 v12, 2, v12\nv_lshlrev_b32 v13, 4, v7\nv_add_u32 v12, v12, v13')
    P(f'v_and_b32 v14, 1, v6\nv_mul_u32_u24 v14, {CV_U1 - CV_U0}, v14\nv_sub_u32 v12, v12, v14')
    P(f's_add_u32 s68, s67, {CV_U1 - 512}\nv_add_u32 v12, s68, v12')
    for k in range(1, 4): P(f'v_subrev_u32 v{12+k}, 1024, v{11+k}')
    P(f'v_lshlrev_b32 v48, 5, v6\nv_lshlrev_b32 v49, 4, v7\nv_add_u32 v48, v48, v49\nv_add_u32 v48, s67, v48')
    ACC = 64; FA = [96, 160]; FB = [128, 192]
    for r in range(32): P(f'v_mov_b32 v{ACC+r}, 0')
    def reads(rho):
        b = rho & 1; L = []
        for x in range(8):
            o = 16*rho + (128 if x % 2 == 0 else 0)
            L.append(I(f'ds_read_b128 v[{FB[b]+4*x}:{FB[b]+4*x+3}], v48 offset:{CV_H + 512*x + 64*rho}'))
            L.append(I(f'ds_read2_b32 v[{FA[b]+4*x}:{FA[b]+4*x+1}], v{12 + x//2} offset0:{o} offset1:{o+1}'))
            L.append(I(f'ds_read2_b32 v[{FA[b]+4*x+2}:{FA[b]+4*x+3}], v{12 + x//2} offset0:{o+2} offset1:{o+3}'))
        return L
    P.need('u1')
    for i in reads(0): P.add(i)
    for rho in range(8):
        b = rho & 1
        mm = []
        for sidx in range(8):
            for a in range(sidx + 1):
                for dl in range(sidx + 1):
                    if max(a, dl) == sidx and a + dl <= 7:
                        J = a + dl
                        mm.append(I(f'v_mfma_f32_16x16x32_bf16 v[{ACC+4*J}:{ACC+4*J+3}], v[{FA[b]+4*dl}:{FA[b]+4*dl+3}], v[{FB[b]+4*a}:{FB[b]+4*a+3}], v[{ACC+4*J}:{ACC+4*J+3}]'))
        assert len(mm) == 36
        for i in interleave(mm, reads(rho + 1) if rho < 7 else [], per_gap=1): P.add(i)
    P('v_lshlrev_b32 v4, 16, v4')
    P(f'v_lshlrev_b32 v50, 5, v6\nv_lshlrev_b32 v51, 3, v7\nv_add_u32 v50, v50, v51')
    P(f's_add_u32 s68, s67, {CV_U0 + 4088 - 3584}\nv_sub_u32 v51, s68, v50\nv_add_u32 v50, s67, v50')
    for J in range(8): P(f'ds_read_b64 v[{96+2*J}:{97+2*J}], v51 offset:{3584 - 512*J}')
    for J in range(8):
        a = ACC + 4*J
        P(f'v_and_b32 v52, 0xffff0000, v{97+2*J}\nv_lshlrev_b32 v53, 16, v{97+2*J}\nv_and_b32 v54, 0xffff0000, v{96+2*J}\nv_lshlrev_b32 v55, 16, v{96+2*J}')
        for r in range(4): P(f'v_fmac_f32 v{a+r}, v{52+r}, v4')
        P(f'v_cvt_pk_bf16_f32 v{a}, v{a}, v{a+1}\nv_cvt_pk_bf16_f32 v{a+1}, v{a+2}, v{a+3}')
        P(f'ds_write_b64 v50, v[{a}:{a+1}] offset:{CV_H + 512*J}', tag='yb')
    P.need('yb')
    for j in range(4): P(f'ds_read_b128 v[{96+4*j}:{99+4*j}], v5 offset:{CV_H + 1024*j}')
    P(f's_add_u32 s66, s65, {WS_YT}')
    for j in range(4): P(f'buffer_store_dwordx4 v[{96+4*j}:{99+4*j}], v2, s[16:19], s66 offen offset:{1024*j}')
    tail(P, label)
    return P, dict(vgpr=256, acc=256, lds=4*CV_STRIDE)
```

```python
from asmlib import *
INF = 1 << 30

def grp(x, tag=None):
    if isinstance(x, str): return [I(l, tag) for l in x.split('\n') if l.strip()]
    if isinstance(x, I): return [x]
    out = []
    for y in x: out += grp(y, tag)
    return out

class Sched:
    def __init__(self):
        self.m = []; self.streams = {}
    def mfma(self, text): self.m.append(I(text))
    def add(self, stream, g, earliest=-1, deadline=INF, tag=None):
        self.streams.setdefault(stream, []).append((grp(g, tag), earliest, deadline))
    def run(self, cap=2):
        capf = cap if callable(cap) else (lambda i: cap)
        q = {}
        for k, l in self.streams.items():
            d = INF; r = []
            for g, e, dl in reversed(l):
                d = min(d, dl); r.append((g, e, d))
            q[k] = list(reversed(r))
        out = []; self.gapfill = []
        cost = lambda g: sum(1 for x in g if x.kind != 'pseudo')
        for i in range(-1, len(self.m)):
            if i >= 0: out.append(self.m[i])
            n = 0
            while True:
                c = [(l[0][2], k) for k, l in q.items() if l and l[0][1] <= i]
                if not c: break
                c.sort(); dl, k = c[0]
                last = i == len(self.m) - 1
                if dl <= i + 1 or last or (i >= 0 and n + min(cost(q[k][0][0]), 1) <= capf(i) and n < capf(i)):
                    g = q[k].pop(0)[0]; out += g; n += cost(g)
                else: break
            for k, l in q.items():
                assert not l or l[0][2] > i + 1 or i == len(self.m) - 1, f'stream {k}: deadline {l[0][2]} missed at {i} (earliest {l[0][1]}) {l[0][0][0].text}'
            self.gapfill.append(n)
        for k, l in q.items(): assert not l, (k, l[0][1])
        return out
    def est(self):
        return sum(max(16, 8 + 4*n) for n in self.gapfill[1:])
```

```python
import sys
from common import *
from k_small import ka, kc, kd
from k_gemm import kb, ke, kf
def build(which, path):
    hdr = ''; body = ''; d = ''
    for nm, fn in which:
        label = f'{nm}_kernel'
        P, info = fn(label)
        P.insert_waits(); P.pad_hazards(verbose=False)
        print(label, dict(P.count()))
        hdr += f'; @launch kernel={label} grid=(256,1,1) block=(256,1,1) lds={info["lds"]}\n'
        body += P.text(); d += desc(label, info['vgpr'], info['acc'])
    open(path, 'w').write(hdr + '.amdgcn_target "amdgcn-amd-amdhsa--gfx950"\n.text\n' + body + '.section .rodata,"a"\n.p2align 6\n' + d.replace('.end_amdhsa_kernel\n', '.end_amdhsa_kernel\n.p2align 6\n'))
if __name__ == '__main__':
    build([('ka', ka), ('kb', kb), ('kc', kc), ('kd', kd), ('ke', ke), ('kf', kf)], sys.argv[1])
```

```python
from asmlib import *
INF = 1 << 30

def grp(x, tag=None):
    if isinstance(x, str): return [I(l, tag) for l in x.split('\n') if l.strip()]
    if isinstance(x, I): return [x]
    out = []
    for y in x: out += grp(y, tag)
    return out

def cost1(x):
    if x.kind == 'pseudo': return 0
    if x.kind == 'valu' and x.trans: return 2
    return 1

class Sched:
    def __init__(self):
        self.m = []; self.cap = []; self.streams = {}; self.marks = {}; self.batches = []
    def n(self): return len(self.m)
    def mark(self, name): self.marks[name] = len(self.m)
    def main(self, text, cap=0, tag=None):
        for x in grp(text, tag):
            self.m.append(x); self.cap.append(cap if x.kind != 'pseudo' else 0)
    def mfma(self, text, cap=2): self.main(text, cap)
    def add(self, stream, g, earliest, deadline=INF, tag=None, sep=False):
        self.streams.setdefault(stream, []).append((grp(g, tag), earliest, deadline, sep))
    def each(self, stream, L, earliest, deadline=INF, tag=None):
        for x in grp(L, tag): self.add(stream, [x], earliest, deadline)
    def spread(self, stream, G, t0, t1, deadline=None, tag=None):
        n = len(G)
        for k, g in enumerate(G): self.add(stream, g, t0 + (k * (t1 - t0)) // n, t1 if deadline is None else deadline, tag)
    def vm(self, batches, t0, t1, deadline=None):
        n = sum(len(b) for b in batches); k = 0
        for b in batches:
            ent = []
            for g in b:
                ent.append((grp(g), t0 + (k * (t1 - t0)) // n, t1 if deadline is None else deadline, True, t0)); k += 1
            self.batches.append(ent)
    def run(self):
        self.batches.sort(key=lambda b: b[0][1])
        self.streams['vm'] = [e for b in self.batches for e in b]
        q = {}
        for k, l in self.streams.items():
            d = INF; r = []
            for g, e, dl, sep, *hard in reversed(l):
                d = min(d - (1 if sep and d < INF else 0), dl)
                if hard: e = max(hard[0], min(e, d - 1))
                r.append((g, e, d, sep))
            q[k] = list(reversed(r))
        out = []; self.fill = []
        cost = lambda g: sum(cost1(x) for x in g)
        for i in range(len(self.m)):
            out.append(self.m[i])
            n = 0; cap = self.cap[i]; blocked = set()
            last = i == len(self.m) - 1
            if self.m[i].kind != 'pseudo' or last:
              while True:
                c = sorted((l[0][2], k) for k, l in q.items() if l and l[0][1] <= i and (last or k not in blocked))
                pick = None
                for dl, k in c:
                    w = cost(q[k][0][0])
                    if dl <= i + 1 or last or w == 0 or n + w <= cap or (n == 0 and cap > 0): pick = k; break
                if pick is None: break
                g, e, dl, sep = q[pick].pop(0); out += g; n += cost(g)
                if sep: blocked.add(pick)
            for k, l in q.items():
                assert not l or l[0][2] > i + 1 or last or self.m[i].kind == 'pseudo', f'stream {k}: deadline {l[0][2]} missed at {i} (earliest {l[0][1]}) {[x.text for x in l[0][0]]}'
            self.fill.append(n)
        for k, l in q.items(): assert not l, (k, l[0][1])
        seen = {}
        for n_, x in enumerate(out):
            if x.need:
                for t in x.need: seen.setdefault(t, n_)
            if x.tag in seen and x.cnt: print(f'  !! op after need of {x.tag}: {x.text}')
        tags = {x.tag for x in out if x.cnt}
        for t in seen:
            if t not in tags: print('  !! need without op', t)
        return out
    def est(self, a=0, b=None):
        t = 0
        for i in range(a, b if b is not None else len(self.m)):
            x = self.m[i]
            t += max(16, 8 + 4*self.fill[i]) if x.kind == 'mfma' else 4*(cost1(x) + self.fill[i])
        return t
    def report(self):
        ms = sorted(self.marks.items(), key=lambda kv: kv[1]) + [('end', len(self.m))]
        for (n, a), (_, b) in zip(ms, ms[1:]):
            nm = sum(1 for x in self.m[a:b] if x.kind == 'mfma')
            print(f'  {n:10s} main {b-a:5d} mfma {nm:4d} fill {sum(self.fill[a:b]):5d} est {self.est(a, b):6d}')
        print('  total est', self.est())
```

```python
import sys
from common import *
from sched2 import *

MF = 'v_mfma_f32_16x16x32_bf16'
SLAB = 28672; STG = 3 * SLAB; STGW = 17408; PAD = 8192; SLOT1 = 9216
MISC = STG + 4 * STGW; HREG = 65536; HW = 5120; UD = 4160
SLOT = [0, SLOT1]
W_STATS = 0x0000000
W_Z2S   = 0x0010000
W_ZFLAG = 0x0060000
W_PFLAG = 0x0061000
W_UFLAG = 0x0062000
W_YFLAG = 0x0063000
W_STAMP = 0x0080000
W_URT   = 0x0100000
W_YT    = 0x0500000
W_Z2F   = 0x0900000
W_PF    = 0x1800000
Q, WIN, WS, KK, VV, SH, SK_, DD, WSP, BSP, WO, OUT, DBG = 8, 12, 16, 20, 24, 28, 32, 36, 40, 44, 48, 52, 56
SRDS = [(Q, 0, 'q'), (WIN, 56, 'win'), (WS, 104, 'ws'), (DBG, 96, 'dbg'), (KK, 8, 'k'), (VV, 16, 'v'), (SH, 24, 'shift'), (SK_, 32, 'ssmk'),
        (DD, 40, 'D'), (WSP, 64, 'wsp'), (BSP, 72, 'bsp'), (WO, 80, 'wout'), (OUT, 88, 'out')]
def sr(x): return f's[{x}:{x+3}]'
def vr(a, n): return f'v[{a}:{a+n-1}]'
def ar(a, n): return f'a[{a}:{a+n-1}]'

DEF = dict(stamp=0, prefetch=1,
           nonce_ld=30, nonce_ck=110, stat_ld=6*63, stat_ck=7*63 + 8,
           z2s_ld=2*63, z2s_ck=3*63, zflag_lag=110, zpoll=7*63 + 40, zcheck=120,
           upoll=10*56, ucheck=12*56, pflag=90, ppoll=170, pcheck=215,
           ypoll=4*32, ycheck=6*32, eread=9*32)

def reduce16(S):
    L = []
    for k in range(8): L.append(f'v_add_f32_dpp v{S+k}, v{S+k}, v{S+k} row_ror:8 row_mask:0xf bank_mask:0x3')
    for k in range(8): L.append(f'v_add_f32_dpp v{S+k}, v{S+k+8}, v{S+k+8} row_ror:8 row_mask:0xf bank_mask:0xc')
    for k in range(4): L.append(f'v_add_f32_dpp v{S+k}, v{S+k}, v{S+k} row_half_mirror row_mask:0xf bank_mask:0x5')
    for k in range(4): L.append(f'v_add_f32_dpp v{S+k}, v{S+k+4}, v{S+k+4} row_half_mirror row_mask:0xf bank_mask:0xa')
    for qp in ('[1,0,3,2]', '[2,3,0,1]'):
        for k in range(4): L.append(f'v_add_f32_dpp v{S+k}, v{S+k}, v{S+k} quad_perm:{qp} row_mask:0xf bank_mask:0xf')
    return L

def build(label, o):
    S = Sched(); slow = Prog()
    M = S.main
    ACC1, ACC2, WF = 16, 72, [128, 156]
    WV, LN16, XV, WR, XR, ONES, CSA = 184, 191, 192, 196, 200, 204, 208
    VDL, VZS, VN, VF, VST = 11, 12, 13, 14, 15
    nstamp = [0]; polls = []
    def stamp(at):
        if not o['stamp']: return
        k = nstamp[0]; nstamp[0] += 1; s = 92
        S.add('stamp', f's_memrealtime s[{s}:{s+1}]', at, at + 1)
        S.add('stamp', f'v_writelane_b32 v{VST}, s{s}, {k}', at + 4, at + 5)
    def poll(name, loads, check):
        slow(f'{label}_{name}_slow:\ns_movk_i32 s101, 0x7fff\n{label}_{name}_loop:')
        for x in loads: slow(x)
        slow('s_waitcnt vmcnt(0)')
        if o['stamp']: slow(f'v_writelane_b32 v{VST}, s101, {16 + len(polls)}')
        polls.append(name)
        for x in check: slow(x)
        slow(f's_cbranch_vccz {label}_{name}_ok\ns_sub_u32 s101, s101, 1\ns_cmp_lg_u32 s101, 0\ns_cbranch_scc1 {label}_{name}_loop\ns_branch {label}_{name}_ok')
        return [f's_cbranch_vccnz {label}_{name}_slow', f'{label}_{name}_ok:']
    def tagcheck(base, n, t):
        L = [f'v_xor_b32 v{t}, s64, v{base}']
        for k in range(1, n): L.append(f'v_bitop3_b32 v{t}, v{t}, v{base+k}, s{64 + k%4} bitop3:0xf6')
        return L + [f'v_and_b32 v{t}, 0xff, v{t}'], f'v_cmp_ne_u32 vcc, 0, v{t}'
    def tagput(base): return [f'v_perm_b32 v{base+k}, v{base+k}, v{VN}, s{76+k}' for k in range(4)]

    S.mark('prologue')
    M(f's_cmp_ge_u32 s2, 256\ns_cbranch_scc1 {label}_end')
    for d, off, nm in SRDS: M(f's_load_dwordx2 s[{d}:{d+1}], s[0:1], {off}')
    M('s_memrealtime s[92:93]')
    M('v_lshrrev_b32 v1, 6, v0\nv_and_b32 v0, 63, v0\nv_readfirstlane_b32 s3, v1')
    M('v_and_b32 v1, 15, v0\nv_lshrrev_b32 v2, 4, v0')
    M('s_and_b32 s4, s2, 7\ns_lshr_b32 s5, s2, 3')
    if o['prefetch']:
        M(f's_getpc_b64 s[6:7]\n{label}_pc:\ns_lshl_b32 s70, s5, 11\ns_lshl_b32 s71, s3, 9\ns_add_u32 s70, s70, s71')
        M(f'v_lshlrev_b32 v3, 3, v0\nv_add_u32 v3, s70, v3\nv_min_u32 v3, {label}_end-{label}_pc-8, v3\nv_and_b32 v3, -4, v3')
        M('global_load_dwordx2 v[254:255], v3, s[6:7]')
    M('s_lshr_b32 s60, s4, 1\ns_lshl_b32 s60, s60, 2\ns_lshr_b32 s6, s5, 3\ns_add_u32 s60, s60, s6')
    M('s_and_b32 s61, s4, 1\ns_lshl_b32 s61, s61, 3\ns_and_b32 s6, s5, 7\ns_add_u32 s61, s61, s6')
    M('s_and_b32 s62, s61, 1')
    M('s_lshl_b32 s63, s60, 7\ns_lshl_b32 s6, s3, 5\ns_add_u32 s63, s63, s6')
    M(f's_mul_i32 s68, s3, {STGW}\ns_add_u32 s68, s68, {STG}\ns_mul_i32 s69, s3, 7168')
    M('s_add_u32 s6, s60, s61\ns_and_b32 s6, s6, 7\ns_mul_i32 s70, s6, 917504\ns_add_u32 s70, s70, 3584\ns_lshl_b32 s72, s6, 8')
    def xv_setup(RS, t0, t1):
        L = []
        for jj in range(4):
            L += [f'v_add_u32 v{t0}, s63, v2', f'v_add_u32 v{t0}, {8*jj}, v{t0}', f'v_mul_u32_u24 v{t0}, {RS}, v{t0}',
                  f'v_add_u32 v{t1}, {4*jj}, v2', f'v_xor_b32 v{t1}, v{t1}, v1', f'v_lshl_add_u32 v{t0}, v{t1}, 4, v{t0}',
                  f'v_subrev_u32 v{XV+jj}, {1024*jj}, v{t0}']
        return L
    M(xv_setup(2048, 3, 4))
    M('s_mul_i32 s4, s61, 224\ns_lshl_b32 s5, s3, 5\ns_lshl_b32 s6, s62, 1')
    for j in range(7):
        M(f'v_add_u32 v3, {64*j}, v0\nv_mul_u32_u24 v4, 4682, v3\nv_lshrrev_b32 v4, 16, v4')
        M(f'v_mul_u32_u24 v5, 14, v4\nv_sub_u32 v3, v3, v5\nv_add_u32 v3, s6, v3')
        M(f'v_subrev_u32 v5, 14, v3\nv_min_u32 v3, v3, v5\nv_lshlrev_b32 v3, 4, v3')
        M(f'v_and_b32 v5, 0x13, v4\nv_and_b32 v6, 4, v4\nv_lshl_or_b32 v5, v6, 1, v5\nv_bfe_u32 v6, v4, 3, 1\nv_lshl_or_b32 v5, v6, 2, v5')
        M(f'v_add_u32 v5, s5, v5\nv_mul_u32_u24 v5, 7168, v5\nv_add3_u32 v3, v3, v5, s4')
        M(f'v_subrev_u32 v{WV+j}, {1024*(j%4)}, v3')
    M(f'v_lshlrev_b32 v{LN16}, 4, v0')
    M('s_waitcnt lgkmcnt(0)')
    for d, off, nm in SRDS: M(f's_and_b32 s{d+1}, s{d+1}, 0xffff\ns_mov_b32 s{d+2}, {hx(SIZE[nm])}\ns_mov_b32 s{d+3}, 0x20000')
    M(f'v_min_u32 v{VF}, 1, v0\nv_lshlrev_b32 v{VF}, 30, v{VF}')
    if o['stamp']: M(f'v_mov_b32 v{VST}, 0\nv_writelane_b32 v{VST}, s92, 0'); nstamp[0] = 1
    M(f's_or_b32 s4, s2, s3\ns_cmp_lg_u32 s4, 0\ns_cbranch_scc1 {label}_nononce')
    M(f's_mul_i32 s4, s92, 0x9E3779B1\ns_or_b32 s4, s4, 1\nv_mov_b32 v3, s4')
    M(f'buffer_store_dword v3, v{VF}, {sr(DBG)}, 0 offen sc0 sc1')
    M(f'{label}_nononce:')

    def wdma(n):
        adv = f's_add_u32 s70, s70, 917504\ns_cmp_eq_u32 s70, {hx(8*917504 + (3584 if n < 8 else 0))}\ns_cselect_b32 s70, {3584 if n < 8 else 0}, s70'
        if n == 7: adv += '\ns_sub_u32 s70, s70, 3584'
        ld = lambda j: grp(f'buffer_load_dwordx4 v{WV+j}, {sr(WIN)}, s70 offen offset:{1024*(j%4)} lds', f'W{n}')
        return [[f's_add_u32 m0, s69, {SLAB*(n%3)}'] + [ld(j) for j in range(4)],
                [f's_add_u32 m0, s69, {SLAB*(n%3) + 4096}'] + [ld(j) for j in range(4, 7)] + ([adv] if n < 15 else [])]
    def udma(xv, srd, slot, tag, pre, adv, first=None):
        ld = lambda j: grp(f'buffer_load_dwordx4 v{xv + j%4}, {sr(srd)}, s{72 if j < 4 else 73} offen offset:{1024*(j%4)} lds', tag)
        return [[([first] if first else []) + grp(f's_add_u32 m0, s68, {SLOT[slot]}\n{pre}')] + [ld(j) for j in range(4)],
                [f's_add_u32 m0, s68, {SLOT[slot] + 4096}'] + [ld(j) for j in range(4, 8)] + [adv]]
    def xdma(n): return udma(XV, Q, n % 2, f'X{n}', 's_add_u32 s73, s72, 8192',
                             's_add_u32 s72, s72, 256\ns_and_b32 s72, s72, 0x7ff' if n < 7 else 's_lshl_b32 s72, s60, 8',
                             need_i(f'xr{n-2}') if n >= 2 else None)
    def sdma(u): return udma(XV, WSP, u % 2, f'S{u}', 's_add_u32 s73, s72, 16384',
                             's_add_u32 s72, s72, 256\ns_and_b32 s72, s72, 0xfff' if u < 15 else 's_lshl_b32 s72, s97, 18',
                             need_i(f'xr{u+6}' if u < 2 else f'sr{u-2}'))
    def ureads(slot, ab, tag):
        return [(ks, grp(f'ds_read_b128 {ar(ab + 8*ks + 4*mt, 4)}, v{XR+ks} offset:{SLOT[slot] + 4096*mt}', tag)) for ks in range(4) for mt in range(2)]
    def flat(B):
        out = []
        for b in B:
            for g in b: out += grp(g)
        return out
    def emit_dma(B):
        for x in flat(B): M([x])
    for B in (xdma(0), wdma(0), xdma(1), wdma(1), wdma(2)): emit_dma(B)
    XS = 96
    M('s_lshl_b32 s4, s60, 7\ns_lshl_b32 s5, s61, 3\ns_add_u32 s4, s4, s5\ns_lshl_b32 s5, s3, 1\ns_add_u32 s4, s4, s5\ns_lshl_b32 s5, s4, 11')
    for j in range(4): M(f'buffer_load_dwordx4 {vr(XS+4*j, 4)}, v{LN16}, {sr(Q)}, s5 offen offset:{1024*j}')
    M(f's_lshl_b32 s82, s4, 3\ns_lshl_b32 s83, s63, 3')
    M(f's_lshl_b32 s85, s60, 14\ns_lshl_b32 s5, s3, 8\ns_add_u32 s85, s85, s5\ns_add_u32 s85, s85, {W_Z2S}\ns_lshl_b32 s5, s61, 10\ns_add_u32 s84, s85, s5')
    M(f's_lshl_b32 s4, s61, 6\ns_lshl_b32 s5, s60, 2\ns_add_u32 s5, s5, s3\ns_add_u32 s5, s5, s4')
    M(f's_lshl_b32 s86, s5, 13\ns_add_u32 s86, s86, {W_Z2F}\ns_add_u32 s87, s86, 4096')
    M(f's_lshl_b32 s88, s5, 2\ns_add_u32 s88, s88, {W_ZFLAG}')
    M(f's_add_u32 s4, s4, s3\ns_lshl_b32 s89, s4, 2\ns_add_u32 s89, s89, {W_ZFLAG}\ns_lshl_b32 s90, s4, 13\ns_add_u32 s90, s90, {W_Z2F}')
    M('s_add_u32 s74, s60, 1\ns_and_b32 s74, s74, 15\ns_lshl_b32 s74, s74, 15')
    for k in range(4): M(f's_mov_b32 s{76+k}, {hx(0x07060500 + k)}')
    M(f's_mov_b32 s80, 1.0\ns_mov_b32 s81, 1.0')
    M('s_and_b32 s4, s2, 7\ns_lshr_b32 s5, s2, 3')
    M('s_lshr_b32 s95, s4, 1\ns_lshl_b32 s95, s95, 3\ns_lshr_b32 s6, s5, 2\ns_add_u32 s95, s95, s6')
    M('s_and_b32 s7, s4, 1\ns_lshl_b32 s7, s7, 2\ns_and_b32 s6, s5, 3\ns_add_u32 s7, s7, s6')
    M('s_lshl_b32 s96, s7, 8\ns_lshl_b32 s6, s3, 6\ns_add_u32 s96, s96, s6')
    M('s_add_u32 s97, s95, s7\ns_cmp_ge_u32 s97, 28\ns_cselect_b32 s6, 28, 0\ns_sub_u32 s97, s97, s6\ns_cmp_ge_u32 s97, 14\ns_cselect_b32 s6, 14, 0\ns_sub_u32 s97, s97, s6')
    M('v_xor_b32 v3, v1, v2\nv_lshlrev_b32 v3, 4, v3\nv_lshl_add_u32 v3, v1, 8, v3')
    M('v_lshrrev_b32 v5, 5, v0\nv_lshlrev_b32 v5, 4, v5\nv_bfe_u32 v4, v0, 4, 1\nv_lshl_add_u32 v5, v4, 2, v5\nv_bfe_u32 v4, v0, 2, 2\nv_add_u32 v5, v5, v4')
    M(f'v_mul_u32_u24 v5, 224, v5\nv_and_b32 v4, 3, v0\nv_lshl_add_u32 v5, v4, 3, v5\nv_sub_u32 v{VDL}, v{LN16}, v5')
    for ks in range(4):
        M(f's_add_u32 s4, s3, {ks}\ns_and_b32 s4, s4, 3\ns_lshl_b32 s5, s4, 6\ns_mul_i32 s4, s4, 7168')
        M(f'v_xor_b32 v4, s5, v3\nv_add_u32 v{XR+ks}, s68, v4\nv_add_u32 v{WR+ks}, s4, v5')
    for e in range(4): M(f'v_mov_b32 v{ONES+e}, 0x3f803f80')
    M(f'v_lshlrev_b32 v{VZS}, 10, v1\nv_lshl_add_u32 v{VZS}, v2, 6, v{VZS}')
    def wreads(n, ks):
        b = WF[ks % 2]
        return [grp(f'ds_read_b64_tr_b16 {vr(b+4*ft+2*h, 2)}, v{WR+ks} offset:{SLAB*(n%3) + 8*h*224 + 32*ft}') for ft in range(7) for h in range(2)]
    M([need_i('W0')]); M('s_barrier'); M([need_i('X0')])
    for ks, g in ureads(0, 0, 'xr0'): M(g)
    for g in wreads(0, 0): M(g)

    T1 = {}
    def gemm1(n0, n1):
        for n in range(n0, n1):
            ps = n // 8
            for ks in range(4):
                T1[n, ks] = S.n()
                for ft in range(7):
                    w = vr(WF[ks % 2] + 4*ft, 4)
                    for mt in range(2):
                        a = vr((ACC1, ACC2)[ps] + 8*ft + 4*mt, 4); x = ar(32*(n%8) + 8*ks + 4*mt, 4)
                        S.mfma(f'{MF} {a}, ' + (f'{x}, {w}' if ps == 0 else f'{w}, {x}') + f', {"0" if n%8 == 0 and ks == 0 else a}')
                    if ks == 0:
                        a = vr(CSA + 4*ft, 4); x = vr(ONES, 4)
                        S.mfma(f'{MF} {a}, ' + (f'{x}, {w}' if ps == 0 else f'{w}, {x}') + f', {"0" if n%8 == 0 else a}')
    use1 = lambda n, ks, ft: T1[n, ks] + (3 if ks == 0 else 2)*ft
    S.mark('pass1'); gemm1(0, 8)
    S.mark('gelu2'); G0 = S.n()
    SG, RA1, RA2, TP, SUM, CS1 = 72, 88, 96, 104, 112, 236
    for ft in range(7):
        a = [vr(ACC1 + 8*ft + 2*p, 2) for p in range(4)]; t = [vr(TP + 2*p, 2) for p in range(4)]
        cs = vr(CS1 + (ft & ~1), 2); sel = f'op_sel:[0,{ft&1},0] op_sel_hi:[1,{ft&1},1]'
        L = [f'v_pk_fma_f32 {a[p]}, {vr(SG+4*p, 2)}, {cs}, {a[p]} {sel} neg_lo:[1,0,0] neg_hi:[1,0,0]' for p in range(4)]
        L += [f'v_pk_mul_f32 {t[p]}, {a[p]}, {a[p]}' for p in range(4)]
        L += [f'v_pk_fma_f32 {t[p]}, {t[p]}, {vr(RA2+2*p, 2)}, {vr(RA1+2*p, 2)}' for p in range(4)]
        L += [f'v_pk_mul_f32 {t[p]}, {t[p]}, {a[p]}' for p in range(4)]
        L += [f'v_exp_f32 v{TP+e}, v{TP+e}' for e in range(8)]
        L += [f'v_pk_add_f32 {t[p]}, {t[p]}, s[80:81]' for p in range(4)]
        L += [f'v_rcp_f32 v{TP+e}, v{TP+e}' for e in range(8)]
        L += [f'v_pk_mul_f32 {a[p]}, {a[p]}, {t[p]}' for p in range(4)]
        if ft == 0:
            L += [f'v_pk_mul_f32 {vr(SUM+4*p, 2)}, {a[p]}, s[80:81]' for p in range(4)]
            L += [f'v_pk_mul_f32 {vr(SUM+4*p+2, 2)}, {a[p]}, {a[p]}' for p in range(4)]
        else:
            L += [f'v_pk_add_f32 {vr(SUM+4*p, 2)}, {vr(SUM+4*p, 2)}, {a[p]}' for p in range(4)]
            L += [f'v_pk_fma_f32 {vr(SUM+4*p+2, 2)}, {a[p]}, {a[p]}, {vr(SUM+4*p+2, 2)}' for p in range(4)]
        for k, x in enumerate(L): M(x, cap=1 if k % 4 == 3 else 0)
    G1 = S.n()
    M(reduce16(SUM)); M(tagput(SUM)); M('v_lshlrev_b32 v3, 2, v0')
    M('s_mov_b32 exec_lo, 0x11111111\ns_mov_b32 exec_hi, 0x11111111')
    M(f'buffer_store_dwordx4 {vr(SUM, 4)}, v3, {sr(WS)}, s84 offen sc1')
    M('s_mov_b64 exec, -1')
    S.mark('pass2'); gemm1(8, 16)
    S.mark('kv'); K0 = S.n()
    KR = [ACC1 + 8*j + 4 for j in range(7)]; VR_ = [236 + 4*j for j in range(4)]; SKR = [ACC1 + 8*j for j in range(4)]
    KU, VU = 156, 170; TAP = [50, 56, 58, 64]; OU = [178, 180, 182, 48]
    M(f's_lshl_b32 s4, s3, 11\ns_add_u32 s4, s4, {MISC}')
    M('v_lshrrev_b32 v4, 2, v0\nv_sub_u32 v4, 15, v4\nv_and_b32 v5, 3, v0\nv_lshrrev_b32 v6, 1, v4\nv_lshlrev_b32 v7, 1, v5\nv_xor_b32 v6, v6, v7')
    M('v_lshlrev_b32 v6, 4, v6\nv_and_b32 v4, 1, v4\nv_lshl_add_u32 v6, v4, 3, v6\nv_lshl_add_u32 v6, v5, 9, v6\nv_add_u32 v3, s4, v6')
    M('v_lshrrev_b32 v4, 5, v0\nv_and_b32 v5, 7, v0\nv_lshlrev_b32 v6, 1, v4\nv_xor_b32 v6, v6, v5\nv_lshrrev_b32 v7, 3, v0')
    M('v_lshlrev_b32 v6, 4, v6\nv_lshl_add_u32 v6, v7, 7, v6\nv_add_u32 v10, s4, v6')
    M(f'v_and_b32 v7, 3, v7\nv_lshl_add_u32 v7, v4, 3, v7\nv_lshlrev_b32 v7, 12, v7\nv_lshl_add_u32 v{VZS}, v5, 4, v7')
    M(f'v_xor_b32 v{VDL}, 64, v10')
    M('s_and_b32 s4, s2, 15\ns_lshl_b32 s4, s4, 1\ns_and_b32 s5, s3, 1\ns_add_u32 s4, s4, s5')
    M('s_lshr_b32 s5, s2, 4\ns_lshl_b32 s5, s5, 1\ns_lshr_b32 s6, s3, 1\ns_add_u32 s5, s5, s6')
    M(f's_lshl_b32 s6, s4, 5\ns_add_u32 s6, s6, s5\ns_lshl_b32 s6, s6, 2\ns_add_u32 s70, s6, {W_UFLAG}')
    M(f's_lshl_b32 s4, s4, 17\ns_lshl_b32 s5, s5, 7\ns_sub_u32 s4, s4, s5\ns_add_u32 s84, s4, {W_URT + 3968}\ns_add_u32 s85, s84, {16*4096}')
    for p in range(4):
        L = []
        for t_ in range(4):
            for c in range(2):
                src = SKR[p] + 2*c + t_//2
                L.append(f'v_lshlrev_b32 v{TAP[t_]+c}, 16, v{src}' if t_ % 2 == 0 else f'v_and_b32 v{TAP[t_]+c}, 0xffff0000, v{src}')
        for j in range(7): L += [f'v_lshlrev_b32 v{KU+2*j}, 16, v{KR[j]+p}', f'v_and_b32 v{KU+2*j+1}, 0xffff0000, v{KR[j]+p}']
        for j in range(4): L += [f'v_lshlrev_b32 v{VU+2*j}, 16, v{VR_[j]+p}', f'v_and_b32 v{VU+2*j+1}, 0xffff0000, v{VR_[j]+p}']
        for t_ in range(4):
            for r in range(4):
                k_ = vr(KU + 2*(r + t_), 2); tp = vr(TAP[3 - t_], 2); d = vr(OU[r], 2)
                L.append(f'v_pk_mul_f32 {d}, {k_}, {tp}' if t_ == 0 else f'v_pk_fma_f32 {d}, {k_}, {tp}, {d}')
        for r in range(4): L.append(f'v_pk_mul_f32 {vr(OU[r], 2)}, {vr(OU[r], 2)}, {vr(VU+2*r, 2)}')
        for c in range(2):
            L += [f'v_cvt_pk_bf16_f32 v{KU+2*c}, v{OU[3]+c}, v{OU[2]+c}', f'v_cvt_pk_bf16_f32 v{KU+2*c+1}, v{OU[1]+c}, v{OU[0]+c}']
        for c in range(2): L.append(f'ds_write_b64 v3, {vr(KU+2*c, 2)} offset:{128*(2*(p&1) + c)}')
        for k, x in enumerate(L): M(x, cap=1 if k % 4 == 3 else 0)
        ust = lambda b, b2: [f'buffer_store_dwordx4 {vr(b, 4)}, v{VZS}, {sr(WS)}, s84 offen sc1', f'buffer_store_dwordx4 {vr(b2, 4)}, v{VZS}, {sr(WS)}, s85 offen sc1']
        if p & 1:
            b, b2 = (SKR[0], SKR[1]) if p == 1 else (244, 248)
            M(f'ds_read_b128 {vr(b, 4)}, v10\nds_read_b128 {vr(b2, 4)}, v{VDL} offset:1024')
        if p == 2:
            M(ust(SKR[0], SKR[1]), tag='us'); M(f's_add_u32 s84, s84, {4*4096}\ns_add_u32 s85, s85, {4*4096}')
    S.mark('gemm2'); T2 = {}
    ZF = WF; ZR = WR
    for n in range(16):
        for ks in range(4):
            T2[n, ks] = S.n()
            for ft in range(7):
                for mt in range(2):
                    a = vr(ACC1 + 8*ft + 4*mt, 4)
                    S.mfma(f'{MF} {a}, {vr(ZF[ks%2] + 4*ft, 4)}, {ar(32*(n%8) + 8*ks + 4*mt, 4)}, {"0" if n == 0 and ks == 0 else a}')
    S.mark('pepi'); P0 = S.n()
    M1, RB, R1, ZV0, ZV1 = 184, 186, 188, 252, 253
    PO = ZF[0]
    for ft in range(7):
        L = []
        for mt in range(2):
            for h in range(2):
                a = vr(ACC1 + 8*ft + 4*mt + 2*h, 2)
                L.append(f'v_pk_fma_f32 {a}, {a}, {vr(R1, 2)}, {vr(RB, 2)} op_sel:[0,{mt},{mt}] op_sel_hi:[1,{mt},{mt}]')
        for k in range(4): L.append(f'v_pk_mul_f32 {vr(ACC1 + 8*ft + 2*k, 2)}, {vr(ACC1 + 8*ft + 2*k, 2)}, {vr(ACC2 + 8*ft + 2*k, 2)}')
        for mt in range(2):
            for h in range(2):
                a = ACC1 + 8*ft + 4*mt + 2*h
                L.append(f'v_cvt_pk_bf16_f32 v{PO + 8*(ft//2) + 4*mt + 2*(ft%2) + h}, v{a}, v{a+1}')
        M(L)
        if ft % 2 == 1:
            for mt in range(2): M(f'buffer_store_dwordx4 {vr(PO + 8*(ft//2) + 4*mt, 4)}, v{LN16}, {sr(WS)}, s82 offen offset:{1024*mt} sc1', tag='ps')
            M('s_add_u32 s82, s82, 4096')
        if ft == 6:
            for mt in range(2): M(f'buffer_store_dwordx2 {vr(PO + 24 + 4*mt, 2)}, v10, {sr(WS)}, s83 offen offset:{1024*mt} sc1', tag='ps')
    S.mark('conv')
    CA, FA, FB = 16, [48, 112], [80, 144]
    XV2, XR2, CVA, CVB, CVH, CVU, CVD = 244, 248, 4, 8, 250, 251, 9
    M([need_i('cvu')])
    for j in range(4):
        M(f'ds_read_b128 {vr(16+8*j, 4)}, v{CVU} offset:{1024*j}\nds_read_b32 v{20+8*j}, v{CVU} offset:{1024*j + 16}')
    for j in range(4):
        for d in range(4): M(f'v_alignbit_b32 v{16+8*j+d}, v{17+8*j+d}, v{16+8*j+d}, 16')
        M(f'ds_write_b128 v{CVU}, {vr(16+8*j, 4)} offset:{UD + 1024*j}')
    M([need_i('cvh')])
    def creads(rho):
        b = rho & 1; L = []
        for x in range(8):
            of = 16*rho + (128 if x % 2 == 0 else 0)
            L.append((x, f'ds_read_b128 {vr(FB[b]+4*x, 4)}, v{CVB} offset:{512*x + 64*rho}'))
            L.append((x, f'ds_read2_b32 {vr(FA[b]+4*x, 2)}, v{CVA + x//2} offset0:{of} offset1:{of+1}'))
            L.append((x, f'ds_read2_b32 {vr(FA[b]+4*x+2, 2)}, v{CVA + x//2} offset0:{of+2} offset1:{of+3}'))
        return L
    for x, g in creads(0): M(g)
    TC = {}
    for rho in range(8):
        b = rho & 1; first = set()
        for sidx in range(8):
            TC[rho, sidx] = S.n()
            for a in range(sidx + 1):
                for dl in range(sidx + 1):
                    if max(a, dl) == sidx and a + dl <= 7:
                        J = a + dl; c = vr(CA + 4*J, 4)
                        S.mfma(f'{MF} {c}, {vr(FA[b]+4*dl, 4)}, {vr(FB[b]+4*a, 4)}, {c if rho or J in first else "0"}')
                        first.add(J)
    S.mark('cvepi'); C1 = S.n()
    UB = 80
    M(f'v_lshlrev_b32 v{CVD}, 16, v{CVD}')
    for J in range(8):
        a = CA + 4*J
        M(f'v_and_b32 v100, 0xffff0000, v{UB+1+2*J}\nv_lshlrev_b32 v101, 16, v{UB+1+2*J}\nv_and_b32 v102, 0xffff0000, v{UB+2*J}\nv_lshlrev_b32 v103, 16, v{UB+2*J}')
        for h in range(2): M(f'v_pk_fma_f32 {vr(a+2*h, 2)}, {vr(100+2*h, 2)}, {vr(CVD-1, 2)}, {vr(a+2*h, 2)} op_sel:[0,1,0] op_sel_hi:[1,1,1]')
        M(f'v_cvt_pk_bf16_f32 v{a}, v{a}, v{a+1}\nv_cvt_pk_bf16_f32 v{a+1}, v{a+2}, v{a+3}', cap=1)
        M(f'ds_write_b64 v3, {vr(a, 2)} offset:{512*J}')
    for j in range(4): M(f'ds_read_b128 {vr(96+4*j, 4)}, v{CVH} offset:{1024*j}', tag='yb')
    YS = S.n()
    for j in range(4): M(f'buffer_store_dwordx4 {vr(96+4*j, 4)}, v{LN16}, {sr(WS)}, s86 offen offset:{1024*j} sc1', tag='ys')
    S.mark('gemm3'); T3 = {}
    A3, PFR = 16, [48, 64]
    for n in range(14):
        for ks in range(4):
            T3[n, ks] = S.n()
            for q in range(4):
                for dt in range(2):
                    a = vr(A3 + 8*q + 4*dt, 4)
                    S.mfma(f'{MF} {a}, {ar(32*(n%8) + 8*ks + 4*dt, 4)}, {vr(PFR[ks%2] + 4*q, 4)}, {"0" if n == 0 and ks == 0 else a}')
    S.mark('final'); F0 = S.n()
    E, XB, YB, ST, EV, XA, OA, YA = 128, 160, 112, 80, 88, 92, 94, 97
    for q in range(4):
        for dt in range(2):
            a = A3 + 8*q + 4*dt; e = E + 8*q + 4*dt
            for h in range(2): M(f'v_pk_add_f32 {vr(a+2*h, 2)}, {vr(a+2*h, 2)}, {vr(e+2*h, 2)}')
            M(f'v_cvt_pk_bf16_f32 v{a}, v{a}, v{a+1}\nv_cvt_pk_bf16_f32 v{a+1}, v{a+2}, v{a+3}')
            M(f'ds_write_b64 v{XA + q//2}, {vr(a, 2)} offset:{256*(q%2) + 32*dt}')
    for j in range(4): M(f'ds_read_b128 {vr(XB+4*j, 4)}, v{OA + max(0, j-1)} offset:{1024 if j == 1 else 0}')
    for j in range(4): M(f'buffer_store_dwordx4 {vr(XB+4*j, 4)}, v{EV+j}, {sr(OUT)}, s87 offen')
    if o['stamp']:
        M(f's_memrealtime s[92:93]\nv_writelane_b32 v{VST}, s92, 15')
        M(f's_lshl_b32 s4, s2, 2\ns_add_u32 s4, s4, s3\ns_lshl_b32 s4, s4, 7\ns_add_u32 s4, s4, {W_STAMP}\nv_lshlrev_b32 v3, 2, v0\ns_mov_b32 exec_hi, 0')
        M(f'buffer_store_dword v{VST}, v3, {sr(WS)}, s4 offen')

    bar = lambda *tags: [need_i(*tags), I('s_waitcnt lgkmcnt(0)'), I('s_barrier')] if tags else [I('s_waitcnt lgkmcnt(0)'), I('s_barrier')]
    def zreads(n, ks):
        return [grp(f'ds_read_b128 {vr(ZF[ks%2] + 4*ft, 4)}, v{ZR+ks} offset:{SLAB*((n+1)%3) + 1024*ft}') for ft in range(7)]
    P1 = T1[0, 0]; P2 = T1[8, 0]; G2 = T2[0, 0]; CV = TC[0, 0]; G3 = T3[0, 0]
    for n in range(16):
        for ks in range(4):
            n2, k2 = (n, ks + 1) if ks < 3 else (n + 1, 0)
            if n == 7 and ks == 2: S.add('rd', bar(), T1[7, 2] - 1, T1[7, 2])
            if n2 < 16:
                if k2 == 0: S.add('rd', bar(f'W{n2}'), T1[n, 3] - 1, T1[n, 3])
                for q, g in enumerate(wreads(n2, k2)):
                    S.add('rd', g, T1[n, ks] - 1, use1(n2, k2, q//2) if n2 != 8 or k2 else G0)
            else:
                S.each('rd', [f'v_add_u32 v{WR+k}, v{WR+k}, v{VDL}' for k in range(4)], T1[15, 2] - 1, T1[15, 3])
                S.add('rd', bar(), T1[15, 3] - 1, T1[15, 3])
                for q, g in enumerate(zreads(0, 0)): S.add('rd', g, T1[15, 3] - 1, K0)
        if n + 3 < 16: S.vm(wdma(n + 3), T1[n, 3], T1[n + 1, 3] if n != 7 else G0 + 60)
        if n + 1 < 8:
            for q, (ks, g) in enumerate(ureads((n + 1) % 2, 32*(n + 1), f'xr{n+1}')):
                S.add('xr', ([need_i(f'X{n+1}')] if q == 0 else []) + g, T1[n, 3], T1[n + 1, ks])
        if n + 2 < 8: S.vm(xdma(n + 2), T1[n, 1], T1[n, 3])
    L = []
    for rr in range(2):
        s_, q_ = 112 + rr, 114 + rr
        for j in range(8):
            r = XS + 8*rr + j
            L += [f'v_lshlrev_b32 v116, 16, v{r}', f'v_and_b32 v117, 0xffff0000, v{r}']
            if j == 0: L += [f'v_add_f32 v{s_}, v116, v117', f'v_mul_f32 v{q_}, v116, v116', f'v_fmac_f32 v{q_}, v117, v117']
            else: L += [f'v_add_f32 v{s_}, v{s_}, v116', f'v_fmac_f32 v{q_}, v116, v116', f'v_add_f32 v{s_}, v{s_}, v117', f'v_fmac_f32 v{q_}, v117, v117']
    for mod in ('row_ror:8 row_mask:0xf', 'row_ror:4 row_mask:0xf', 'row_ror:2 row_mask:0xf', 'row_ror:1 row_mask:0xf', 'row_bcast:15 row_mask:0xa', 'row_bcast:31 row_mask:0xc'):
        L += [f'v_add_f32_dpp v{r}, v{r}, v{r} {mod} bank_mask:0xf' for r in range(112, 116)]
    c = hx(f2u(1/1024))
    L += [f'v_mul_f32 v{r}, {c}, v{r}' for r in range(112, 116)]
    L += [f'v_fma_f32 v{114+k}, -v{112+k}, v{112+k}, v{114+k}' for k in range(2)]
    L += [f'v_max_f32 v{114+k}, 0, v{114+k}' for k in range(2)]
    L += [f'v_add_f32 v{114+k}, {hx(f2u(1e-5))}, v{114+k}' for k in range(2)]
    L += [f'v_rsq_f32 v{114+k}, v{114+k}' for k in range(2)]
    L += ['v_sub_u32 v116, 63, v0', 'v_min_u32 v116, 1, v116', 'v_lshlrev_b32 v116, 30, v116', 'v_mov_b32 v117, 0']
    S.each('st', L[-1:], P1)
    ld = [f'buffer_load_dword v{VN}, v117, {sr(DBG)}, 0 offen sc0 sc1']
    S.add('st', ld, P1 + o['nonce_ld'])
    S.each('st', [x.replace('v117', 'v118') for x in L[:-1]], P1 + o['nonce_ld'])
    ck = [f'v_cmp_eq_u32 vcc, 0, v{VN}']
    S.add('st', ck + poll('nonce', ld, ck), P1 + o['nonce_ck'])
    S.each('st', [f'v_readfirstlane_b32 s64, v{VN}'] + tagput(112), P1)
    S.add('st', f'buffer_store_dwordx4 v[112:115], v116, {sr(WS)}, s82 offen sc1', P1)
    S.each('st', ['s_lshr_b32 s65, s64, 8', 's_lshr_b32 s66, s64, 16', 's_lshr_b32 s67, s64, 24', 'v_lshlrev_b32 v116, 6, v2'], P1)
    ld = [f'buffer_load_dwordx4 {vr(SG+4*j, 4)}, v116, {sr(WS)}, s83 offen offset:{16*j} sc1' for j in range(4)]
    S.each('st', ld, P1 + o['stat_ld'])
    S.each('st', xv_setup(4096, 117, 118), T1[6, 0])
    pre, cmp_ = tagcheck(SG, 16, 117)
    S.each('st', pre, P1 + o['stat_ck'])
    S.add('st', [cmp_] + poll('stat', ld, pre + [cmp_]), P1)
    S.each('st', ['v_lshrrev_b32 v117, 2, v1', 'v_lshl_add_u32 v116, v117, 4, v116'], P1)
    S.add('st', f'buffer_load_dwordx4 v[252:255], v116, {sr(WS)}, s83 offen sc1', P1)
    L = []
    for r in range(8):
        rr = SG + 4*(r//2) + 2 + r % 2
        L += [f'v_mul_f32 v{RA2+r}, v{rr}, v{rr}', f'v_mul_f32 v{RA1+r}, {hx(f2u(GELU_C1))}, v{rr}', f'v_mul_f32 v{RA2+r}, v{RA2+r}, v{rr}',
              f'v_mul_f32 v{RA2+r}, {hx(f2u(GELU_C2))}, v{RA2+r}']
    S.each('st', L, P1, G0)
    def cs_reduce(t):
        L = [f'ds_read_b128 {vr(t+4*w, 4)}, v5 offset:{STGW*w}' for w in range(4)]
        L += [f'v_add_f32 v{t+e}, v{t+e}, v{t+4+e}' for e in range(4)] + [f'v_add_f32 v{t+8+e}, v{t+8+e}, v{t+12+e}' for e in range(4)]
        L += [f'v_add_f32 v{t+e}, v{t+e}, v{t+8+e}' for e in range(4)]
        return L + [f'ds_write_b128 v6, {vr(t, 4)} offset:{PAD + 512}']
    S.each('cs', ['v_lshlrev_b32 v3, 2, v1', 'v_add_u32 v3, s68, v3', 'v_lshlrev_b32 v4, 4, v2', 'v_add_u32 v4, s68, v4',
                  f'v_and_b32 v6, 0x1f0, v{LN16}', f'v_add_u32 v5, {STG + PAD}, v6', 'v_add_u32 v6, s68, v6'], P1, T1[7, 1])
    S.each('cs', [f'ds_write_b32 v3, v{CSA+4*ft} offset:{PAD + 64*ft}' for ft in range(7)], T1[7, 1], T1[7, 2] - 1)
    S.each('cs', cs_reduce(CSA), T1[7, 2], G0)
    S.each('cs', [f'ds_read_b32 v{CS1+ft}, v3 offset:{PAD + 512 + 64*ft}' for ft in range(7)], T1[7, 2], G0)
    S.add('cs', ['s_mov_b32 exec_lo, 0x10001', 's_mov_b32 exec_hi, 0x10001'] + [f'ds_write_b128 v4, {vr(CSA+4*ft, 4)} offset:{PAD + 64*ft}' for ft in range(7)] +
          ['s_mov_b64 exec, -1'], T1[15, 1], T1[15, 3] - 1)
    S.each('cs', cs_reduce(CSA), T1[15, 3], K0)
    S.each('cs', [f'ds_read_b128 {vr(CSA+4*ft, 4)}, v4 offset:{PAD + 512 + 64*ft}' for ft in range(7)], T1[15, 3], K0)
    S.vm(sdma(0), G0 + 60, G0 + 150); S.vm(sdma(1), G0 + 150, G0 + 240)
    def free_at(u):
        if u < 7: return T1[9 + u, 0]
        if u == 7: return K0
        return T2[u - 7, 0]
    for u in range(16):
        t0 = free_at(u)
        if u >= 8: t0 = max(t0, T2[o.get('sread', lambda u: u - 7)(u), 0])
        for q, (ks, g) in enumerate(ureads(u % 2, 32*(u % 8), f'sr{u}')):
            S.add('xr', ([need_i(f'S{u}')] if q == 0 else []) + g, t0, min(t0 + 40, T2[u, ks]))
        if u + 2 < 16: S.vm(sdma(u + 2), t0 + 40, t0 + 80)
    PZ = 236
    ld = [f'buffer_load_dwordx4 {vr(PZ+4*j, 4)}, v{VZS}, {sr(WS)}, s85 offen offset:{16*j} sc1' for j in range(4)]
    S.each('z', ld, P2 + o['z2s_ld'])
    pre, cmp_ = tagcheck(PZ, 16, 7)
    S.each('z', pre, P2 + o['z2s_ck'])
    S.add('z', [cmp_] + poll('z2s', ld, pre + [cmp_]), P2)
    c = hx(f2u(1/1792))
    L = reduce16(PZ) + [f'v_mul_f32 v{PZ+k}, {c}, v{PZ+k}' for k in range(4)]
    L += [f'v_mul_f32 v{7+k}, v{254+k}, v{254+k}' for k in range(2)]
    L += [f'v_fma_f32 v{PZ+2+k}, -v{PZ+k}, v{PZ+k}, v{PZ+2+k}' for k in range(2)]
    L += [f'v_max_f32 v{PZ+2+k}, 0, v{PZ+2+k}' for k in range(2)]
    L += [f'v_mul_f32 v{7+k}, v{7+k}, v{PZ+2+k}' for k in range(2)]
    L += [f'v_add_f32 v{7+k}, {hx(f2u(1e-5))}, v{7+k}' for k in range(2)]
    L += [f'v_rsq_f32 v{7+k}, v{7+k}' for k in range(2)]
    L += [f'v_mul_f32 v{7+k}, v{7+k}, v{254+k}' for k in range(2)]
    L += [f'v_mul_f32 v{9+k}, v{7+k}, v{PZ+k}' for k in range(2)]
    L += [f'v_mov_b32_dpp v{PZ+8+r}, v{7 + r%2} row_newbcast:{4*(r//2)} row_mask:0xf bank_mask:0xf' for r in range(8)]
    L += [f'v_mov_b32_dpp v{PZ+r}, v{9 + r%2} row_newbcast:{4*(r//2)} row_mask:0xf bank_mask:0xf' for r in range(8)]
    S.each('z', L, P2)
    for ft in range(7):
        a = ACC1 + 8*ft
        S.each('z', [f'v_fma_f32 v{a+r}, v{a+r}, v{PZ+8+r}, -v{PZ+r}' for r in range(8)] +
               [f'v_cvt_pk_bf16_f32 v{a+k}, v{a+2*k}, v{a+2*k+1}' for k in range(4)], P2)
        S.add('z', f'buffer_store_dwordx4 {vr(a, 4)}, v{LN16}, {sr(WS)}, s{86 + ft//4} offen offset:{1024*(ft%4)} sc1', P2, tag='zs')
    tz = P2 + o['z2s_ck'] + 130
    S.each('z', ['s_lshr_b32 s4, s2, 4', 's_lshl_b32 s4, s4, 1', 's_lshr_b32 s5, s3, 1', 's_add_u32 s4, s4, s5', 's_lshl_b32 s4, s4, 17',
                 's_and_b32 s5, s2, 15', 's_lshl_b32 s5, s5, 1', 's_and_b32 s6, s3, 1', 's_add_u32 s5, s5, s6', 's_lshl_b32 s6, s5, 6', 's_add_u32 s4, s4, s6',
                 's_lshl_b32 s5, s5, 8',
                 'v_lshrrev_b32 v7, 2, v0', 'v_lshlrev_b32 v7, 13, v7', 'v_and_b32 v10, 3, v0', 'v_lshl_add_u32 v7, v10, 4, v7', 'v_add_u32 v7, s4, v7',
                 'v_subrev_u32 v8, 6144, v7', 'v_subrev_u32 v9, 2048, v7', 'v_lshlrev_b32 v10, 6, v10'], P2)
    kld = lambda j, v, of: f'buffer_load_dwordx4 {vr(KR[j], 4)}, v{v}, {sr(KK)}, 0 offen offset:{of}'
    S.add('z', [need_i('zs'), I(f'buffer_store_dword v{VN}, v{VF}, {sr(WS)}, s88 offen sc1')], tz + o['zflag_lag'])
    S.each('z', [kld(0, 8, 0), kld(1, 8, 2048), kld(2, 9, 0), 'v_add_u32 v8, 4096, v7', kld(3, 7, 0), kld(4, 7, 2048), kld(5, 8, 0), kld(6, 8, 2048)] +
           [f'buffer_load_dwordx4 {vr(VR_[j], 4)}, v{7 + j//2}, {sr(VV)}, 0 offen offset:{2048*(j%2)}' for j in range(4)], P2)
    S.each('z', [f'v_add_u32 v9, s69, v{LN16}'] + [f'ds_write_b128 v9, {vr(ACC1 + 8*ft, 4)} offset:{SLAB + 1024*ft}' for ft in range(7)], T1[13, 3], T1[15, 3] - 1)
    S.each('z', [f'buffer_load_dwordx4 {vr(SKR[j], 4)}, v10, {sr(SH)}, s5 offen offset:{16*j}' for j in range(4)], P2, K0)
    S.each('z', ['v_lshrrev_b32 v7, 2, v1', 'v_lshlrev_b32 v8, 6, v7', 'v_bfe_u32 v9, v1, 1, 1', 'v_lshl_add_u32 v8, v9, 4, v8', 'v_and_b32 v9, 1, v1', f'v_lshl_add_u32 v190, v9, 2, v8',
                 'v_and_b32 v9, 3, v1', 'v_lshl_add_u32 v7, v7, 3, v9', 'v_add_u32 v7, s63, v7', 'v_lshlrev_b32 v7, 1, v7'] +
           [f'buffer_load_dword v{M1+mt}, v190, {sr(WS)}, s83 offen offset:{32*mt} sc1' for mt in range(2)] +
           [f'buffer_load_dword v{R1+mt}, v190, {sr(WS)}, s83 offen offset:{32*mt + 8} sc1' for mt in range(2)] +
           [f'buffer_load_ushort v{RB+mt}, v7, {sr(BSP)}, 0 offen offset:{8*mt}' for mt in range(2)], T1[13, 3], K0)
    def zdma(n, first=None):
        ld = lambda j: grp(f'buffer_load_dwordx4 v{ZVv[j//4]}, {sr(WS)}, s74 offen offset:{1024*(j%4)} sc1 lds', f'Z{n}')
        sl = SLAB*((n + 1) % 3)
        return [(first or []) + [f's_add_u32 m0, s69, {sl}'] + [ld(j) for j in range(4)],
                [f's_add_u32 m0, s69, {sl + 4096}'] + [ld(j) for j in range(4, 7)] + ['s_add_u32 s74, s74, 0x8000\ns_and_b32 s74, s74, 0x7ffff']]
    ZVv = [ZV0, ZV1]
    S.each('z', [f'v_add_u32 v{ZV0}, s90, v{LN16}', f'v_add_u32 v{ZV1}, 4096, v{ZV0}', 'v_lshlrev_b32 v254, 4, v1'], P2, K0)
    ld = [f'buffer_load_dword v255, v254, {sr(WS)}, s89 offen sc1']; ck = ['v_cmp_ne_u32 vcc, s64, v255']
    S.add('z', ld, P2 + o['zpoll'], K0 + 8)
    t0 = K0 + o['zcheck']
    S.vm(zdma(1, [ck + poll('zf', ld, ck)]), t0, t0 + 36); S.vm(zdma(2), t0 + 36, t0 + 72)
    for n in range(16):
        for ks in range(4):
            n2, k2 = (n, ks + 1) if ks < 3 else (n + 1, 0)
            if k2 == 0: S.add('rd', bar(f'Z{n2}') if n2 < 16 else bar(), T2[n, 3] - 1, T2[n, 3])
            if n2 < 16:
                for q, g in enumerate(zreads(n2, k2)): S.add('rd', g, T2[n, ks] - 1, T2[n2, k2] + 2*q)
        if n + 3 < 16: S.vm(zdma(n + 3), T2[n, 3], T2[n + 1, 3])
    A1, A2, TM = 204, 206, 236
    L = [f'v_lshlrev_b32 v{RB+mt}, 16, v{RB+mt}' for mt in range(2)]
    L += [f'v_mul_f32 v{A2+mt}, v{R1+mt}, v{R1+mt}' for mt in range(2)] + [f'v_mul_f32 v{A1+mt}, {hx(f2u(GELU_C1))}, v{R1+mt}' for mt in range(2)]
    L += [f'v_mul_f32 v{A2+mt}, v{A2+mt}, v{R1+mt}' for mt in range(2)] + [f'v_mul_f32 v{RB+mt}, v{RB+mt}, v{R1+mt}' for mt in range(2)]
    L += [f'v_mul_f32 v{A2+mt}, {hx(f2u(GELU_C2))}, v{A2+mt}' for mt in range(2)]
    for ft in range(7):
        for mt in range(2):
            a = [ACC2 + 8*ft + 4*mt + e for e in range(4)]; t = [TM + e for e in range(4)]
            L += [f'v_fma_f32 v{a[e]}, -v{M1+mt}, v{CSA+4*ft+e}, v{a[e]}' for e in range(4)]
            L += [f'v_mul_f32 v{t[e]}, v{a[e]}, v{a[e]}' for e in range(4)]
            L += [f'v_fma_f32 v{t[e]}, v{t[e]}, v{A2+mt}, v{A1+mt}' for e in range(4)]
            L += [f'v_mul_f32 v{t[e]}, v{t[e]}, v{a[e]}' for e in range(4)]
            L += [f'v_exp_f32 v{t[e]}, v{t[e]}' for e in range(4)]
            L += [f'v_add_f32 v{t[e]}, 1.0, v{t[e]}' for e in range(4)]
            L += [f'v_rcp_f32 v{t[e]}, v{t[e]}' for e in range(4)]
            L += [f'v_mul_f32 v{a[e]}, v{a[e]}, v{t[e]}' for e in range(4)]
    S.each('g1', L + [f'v_mov_b32 v{208+e}, 0' for e in range(4)], G2 + 4, T2[14, 0])
    S.add('g1', [need_i('or5')] + grp(['s_mov_b64 exec, 0x3fffffff', f'ds_write_b128 v{CVH}, v[208:211]', 's_mov_b64 exec, 0xf',
                 f'ds_write_b128 v{CVU}, v[208:211] offset:4096', f'ds_write_b128 v{CVU}, v[208:211] offset:{UD + 4096}', 's_mov_b64 exec, -1']), T2[14, 0] + 44, P0)
    S.each('su', ust(244, 248), G2, tag='us')
    L = ['s_lshl_b32 s4, s2, 2', 's_add_u32 s4, s4, s3',
         's_lshl_b32 s71, s4, 12', f's_add_u32 s75, s71, {W_URT}', f's_add_u32 s86, s71, {W_YT}',
         's_lshl_b32 s98, s4, 2', f's_add_u32 s98, s98, {W_YFLAG}',
         's_lshr_b32 s94, s4, 5', 's_lshl_b32 s94, s94, 7', f's_add_u32 s94, s94, {W_UFLAG}',
         's_lshl_b32 s4, s4, 1', f'v_mov_b32 v{CVD}, 0', f'buffer_load_ushort v{CVD}, v{CVD}, {sr(DD)}, s4 offen',
         's_lshl_b32 s4, s60, 1', 's_lshr_b32 s5, s3, 1', 's_add_u32 s4, s4, s5',
         's_lshl_b32 s88, s4, 7', 's_lshl_b32 s5, s61, 3', 's_add_u32 s88, s88, s5', 's_and_b32 s6, s3, 1', 's_lshl_b32 s5, s6, 2', 's_add_u32 s88, s88, s5',
         f's_add_u32 s88, s88, {W_PFLAG}',
         's_mul_i32 s4, s4, 56', 's_lshr_b32 s5, s61, 1', 's_mul_i32 s5, s5, 7', 's_add_u32 s4, s4, s5', 's_lshl_b32 s4, s4, 12',
         's_lshl_b32 s6, s6, 11', 's_add_u32 s4, s4, s6', f's_add_u32 s4, s4, {W_PF}', 's_add_u32 s83, s4, 12288', 's_lshl_b32 s5, s62, 14', 's_add_u32 s82, s4, s5',
         's_lshl_b32 s5, s62, 3', f'v_add_u32 v10, s5, v{LN16}',
         's_lshl_b32 s87, s95, 17', 's_lshl_b32 s91, s95, 7', f's_add_u32 s91, s91, {W_PFLAG}',
         's_lshl_b32 s99, s96, 1', f's_add_u32 s99, s99, {W_YFLAG}',
         's_lshl_b32 s100, s96, 11', 's_lshl_b32 s5, s95, 7', 's_add_u32 s100, s100, s5', f's_add_u32 s100, s100, {W_YT}',
         's_lshl_b32 s60, s95, 9', 's_lshl_b32 s63, s3, 12', 's_lshl_b32 s90, s97, 14',
         f's_mul_i32 s4, s95, {56*4096}', 's_add_u32 s4, s4, s63', f's_add_u32 s4, s4, {W_PF}']
    S.each('su', L, G2)
    S.add('su', [need_i('us'), I(f'buffer_store_dword v{VN}, v{VF}, {sr(WS)}, s70 offen sc1')], G2 + 150)
    PVD = VZS
    L = [f'v_add_u32 v{PVD}, s4, v{LN16}',
         f's_mul_i32 s85, s3, {HW}', f's_add_u32 s85, s85, {HREG}', 's_lshl_b32 s84, s3, 11', f's_add_u32 s84, s84, {MISC}', f's_add_u32 s61, s68, {PAD}',
         f'v_add_u32 v{CVH}, s85, v{LN16}', f'v_add_u32 v{CVU}, s61, v{LN16}',
         'v_lshrrev_b32 v4, 2, v0', 'v_lshlrev_b32 v4, 11, v4', 'v_and_b32 v5, 3, v0', 'v_bfe_u32 v6, v0, 4, 1', 'v_lshlrev_b32 v6, 1, v6', 'v_xor_b32 v6, v5, v6',
         'v_lshlrev_b32 v6, 4, v6', f'v_add3_u32 v{XV2}, v4, v6, s96'] + [f'v_add_u32 v{XV2+j}, {31744*j}, v{XV2}' for j in range(1, 4)] + [
         'v_lshlrev_b32 v4, 2, v2', 'v_bfe_u32 v6, v0, 2, 2', 'v_add_u32 v4, v4, v6', 'v_lshlrev_b32 v4, 6, v4', 'v_lshl_add_u32 v4, v5, 3, v4',
         'v_and_b32 v6, 1, v2', 'v_lshl_add_u32 v4, v6, 5, v4', f'v_add_u32 v{XR2}, s68, v4', 'v_xor_b32 v4, 32, v4', f'v_add_u32 v{XR2+1}, s68, v4',
         'v_lshlrev_b32 v3, 5, v1', f'v_lshl_add_u32 v{CVB}, v2, 4, v3', f'v_add_u32 v{CVB}, s85, v{CVB}',
         'v_lshl_add_u32 v3, v2, 3, v3', f's_add_u32 s4, s61, {4088 - 3584}', f'v_sub_u32 v{VDL}, s4, v3', 'v_add_u32 v3, s85, v3',
         'v_sub_u32 v4, 1807, v1', 'v_lshrrev_b32 v4, 1, v4', 'v_lshlrev_b32 v4, 2, v4', 'v_lshl_add_u32 v4, v2, 4, v4',
         'v_and_b32 v5, 1, v1', f'v_mul_u32_u24 v5, {UD}, v5', 'v_sub_u32 v4, v4, v5', f's_add_u32 s4, s61, {UD - 512}', 'v_add_u32 v4, s4, v4',
         'v_subrev_u32 v5, 1024, v4', 'v_subrev_u32 v6, 2048, v4', 'v_subrev_u32 v7, 3072, v4',
         'v_and_b32 v254, 31, v0', 'v_lshlrev_b32 v254, 2, v254']
    S.each('su', L, G2 + 160, T2[7, 0])
    oslot = lambda j: j % 2 if j < 6 or j > 8 else 0
    oprev = {0: 'sr14', 1: 'sr15', 6: 'or4', 7: 'or6', 8: 'or7', 9: 'cu'}
    def odma(j): return udma(XV2, WO, oslot(j), f'O{j}', 's_add_u32 s73, s72, 0x20000',
                             f's_add_u32 s72, s72, 0x40000\ns_cmp_eq_u32 s72, {hx(14 << 18)}\ns_cselect_b32 s72, 0, s72', need_i(oprev.get(j, f'or{j-2}')))
    def oreads(j):
        return [(ks, grp(f'ds_read_b64_tr_b16 {ar(32*(j%8) + 8*ks + 4*dt + 2*h, 2)}, v{XR2+dt} offset:{SLOT[oslot(j)] + (32*ks + 16*h)*64}', f'or{j}'))
                for ks in range(4) for dt in range(2) for h in range(2)]
    ord_t = {j: T2[9 + j, 0] for j in range(7)}; ord_t[7] = CV + 110
    for j in range(8, 14): ord_t[j] = T3[2*j - 15, 0]
    RW = 48
    odm_t = {0: T2[7, 0] + 40, 1: T2[8, 0] + 40, 6: ord_t[4] + RW, 7: CV, 8: ord_t[7] + RW, 9: G3}
    for j in range(14):
        rw = RW if j < 8 else 24
        t0 = odm_t.get(j) if j in odm_t else ord_t[j - 2] + (RW if j < 10 else 24)
        t1 = t0 + (40 if j < 7 or j == 8 else 24)
        S.vm(odma(j), t0, t1)
        for q, (ks, g) in enumerate(oreads(j)):
            S.add('xr', ([need_i(f'O{j}')] if q == 0 else []) + g, ord_t[j], min(ord_t[j] + rw, T3[j, ks]))
    ld = [f'buffer_load_dword v255, v254, {sr(WS)}, s94 offen sc1']
    S.add('su', ld, G2 + o['upoll'])
    S.add('su', ck + poll('uf', ld, ck), G2 + o['ucheck'], T2[14, 0])
    S.vm([['s_add_u32 m0, s85, 480'] + [grp(f'buffer_load_dwordx4 v{LN16}, {sr(SK_)}, s71 offen offset:{1024*j} lds', 'cvh') for j in range(4)]], T2[13, 3], T2[14, 1])
    S.vm([[[need_i('or5'), I('s_mov_b32 m0, s61')]] + [grp(f'buffer_load_dwordx4 v{LN16}, {sr(WS)}, s75 offen offset:{1024*j} sc1 lds', 'cvu') for j in range(4)]],
         ord_t[5] + RW, ord_t[5] + RW + 12)
    for rho in range(7):
        for x, g in creads(rho + 1): S.add('rd', g, TC[rho, 0] - 1, TC[rho + 1, x], tag='cu')
    S.each('rd', [f'ds_read_b64 {vr(UB+2*J, 2)}, v{VDL} offset:{3584 - 512*J}' for J in range(8)], TC[7, 0], C1, tag='cu')
    S.add('su', [need_i('ps'), I(f'buffer_store_dword v{VN}, v{VF}, {sr(WS)}, s88 offen sc1')], CV + o['pflag'])
    ld = [f'buffer_load_dword v255, v254, {sr(WS)}, s91 offen sc1']
    S.add('su', ld, CV + o['ppoll'], CV + o['ppoll'] + 4)
    def pdma(n, first=None):
        return [(first or []) + [f's_add_u32 m0, s63, {16384*(n%4)}'] +
                [grp(f'buffer_load_dwordx4 v{PVD}, {sr(WS)}, s90 offen offset:{1024*j} sc1 lds', f'P{n}') for j in range(4)] +
                [f's_add_u32 s90, s90, 0x4000\ns_cmp_eq_u32 s90, {hx(14 << 14)}\ns_cselect_b32 s90, 0, s90']]
    t0 = CV + o['pcheck']
    S.vm(pdma(0, [ck + poll('pf', ld, ck)]), t0, t0 + 10)
    for n in range(1, 4): S.vm(pdma(n), t0 + 10*n, t0 + 10*n + 10)
    def preads(n, ks):
        return [grp(f'ds_read_b128 {vr(PFR[ks%2] + 4*q, 4)}, v{LN16} offset:{16384*(n%4) + 4096*ks + 1024*q}') for q in range(4)]
    S.add('rd', [need_i('P0'), I('s_barrier')], YS - 1, YS)
    for g in preads(0, 0): S.add('rd', g, YS - 1, YS)
    for n in range(14):
        for ks in range(4):
            n2, k2 = (n, ks + 1) if ks < 3 else (n + 1, 0)
            if n2 < 14:
                if k2 == 0: S.add('rd', bar(f'P{n2}'), T3[n, 3] - 1, T3[n, 3])
                for q, g in enumerate(preads(n2, k2)): S.add('rd', g, T3[n, ks] - 1, T3[n2, k2] + 2*q)
        if n + 4 < 14: S.vm(pdma(n + 4), T3[n, 3], T3[n + 1, 3])
    L = ['v_lshrrev_b32 v4, 2, v0', 'v_lshlrev_b32 v4, 11, v4', 'v_and_b32 v5, 3, v0', 'v_lshlrev_b32 v6, 4, v5', f'v_add3_u32 v{EV}, v4, v6, s96'] + \
        [f'v_add_u32 v{EV+j}, {32768*j}, v{EV}' for j in range(1, 4)] + [
         's_add_u32 s4, s85, 4096', f'v_add_u32 v{OA}, s84, v{LN16}', f'v_add_u32 v{OA+1}, s4, v{LN16}', f'v_add_u32 v{OA+2}, s61, v{LN16}',
         'v_bfe_u32 v4, v1, 2, 1', 'v_lshlrev_b32 v4, 3, v4', 'v_and_b32 v6, 3, v1', 'v_add_u32 v4, v4, v6', 'v_lshlrev_b32 v4, 6, v4', 'v_lshl_add_u32 v4, v2, 3, v4',
         'v_lshrrev_b32 v6, 3, v1', f'v_lshl_add_u32 v{XA}, v6, 10, v4', f'v_add_u32 v{XA}, s84, v{XA}',
         's_sub_u32 s5, s61, s4', 'v_mul_lo_u32 v6, v6, s5', f'v_add3_u32 v{XA+1}, v6, v4, s4',
         'v_lshlrev_b32 v4, 2, v2', 'v_bfe_u32 v6, v0, 2, 2', 'v_add_u32 v4, v4, v6', 'v_lshlrev_b32 v4, 7, v4', 'v_lshl_add_u32 v4, v5, 4, v4', f'v_add_u32 v{YA}, s85, v4',
         'v_lshrrev_b32 v4, 3, v0', 'v_lshlrev_b32 v4, 12, v4', 'v_and_b32 v5, 7, v0', 'v_lshl_add_u32 v98, v5, 4, v4'] + \
        [f'v_add_u32 v{98+j}, {31744*j}, v98' for j in range(1, 4)] + \
        [f'buffer_load_dword v{ST + 2*q + k}, v190, {sr(WS)}, s60 offen offset:{256*(q//2) + 32*(q%2) + 8*k} sc1' for q in range(4) for k in range(2)]
    S.each('su', L, G3 + 2, T3[3, 0])
    S.add('su', [need_i('ys'), I(f'buffer_store_dword v{VN}, v{VF}, {sr(WS)}, s98 offen sc1')], G3 + o.get('yflag', 70))
    xm = ['s_mov_b32 m0, s84', 's_add_u32 m0, s84, 1024', 's_add_u32 m0, s85, 4096', 's_mov_b32 m0, s61']
    S.vm([[xm[j], grp(f'buffer_load_dwordx4 v{EV+j}, {sr(Q)}, s87 offen lds', 'ex')] for j in range(4)], T3[3, 0], T3[4, 0], T3[5, 0])
    ld = [f'buffer_load_dword v255, v254, {sr(WS)}, s99 offen sc1']
    S.add('su', ld, G3 + o['ypoll'], G3 + o['ypoll'] + 4)
    S.vm([[ck + poll('yf', ld, ck), 's_mov_b32 m0, s85'] + [grp(f'buffer_load_dwordx4 v{98+j}, {sr(WS)}, s100 offen offset:{1024*j} sc1 lds', 'ex') for j in range(4)]],
         G3 + o['ycheck'], G3 + o['ycheck'] + 16)
    L = []
    for q in range(4):
        for dt in range(2):
            k = 2*q + dt
            L += [f'ds_read_b64 {vr(XB+2*k, 2)}, v{XA + q//2} offset:{256*(q%2) + 32*dt}', f'ds_read_b64_tr_b16 {vr(YB+2*k, 2)}, v{YA} offset:{2048*dt + 64*(q//2) + 8*(q%2)}']
    L += [f'v_mul_f32 v{ST+2*q}, v{ST+2*q}, v{ST+2*q+1}' for q in range(4)]
    for q in range(4):
        for dt in range(2):
            k = 2*q + dt; e = E + 4*k; xb = XB + 2*k; yb = YB + 2*k
            L += [f'v_lshlrev_b32 v{e}, 16, v{xb}', f'v_and_b32 v{e+1}, 0xffff0000, v{xb}', f'v_lshlrev_b32 v{e+2}, 16, v{xb+1}', f'v_and_b32 v{e+3}, 0xffff0000, v{xb+1}']
            L += [f'v_lshlrev_b32 v104, 16, v{yb}', f'v_and_b32 v105, 0xffff0000, v{yb}', f'v_lshlrev_b32 v106, 16, v{yb+1}', f'v_and_b32 v107, 0xffff0000, v{yb+1}']
            L += [f'v_fma_f32 v{108+r}, v{e+r}, v{ST+2*q+1}, -v{ST+2*q}' for r in range(4)]
            L += [f'v_fmac_f32 v{e+r}, v{108+r}, v{104+r}' for r in range(4)]
    S.add('su', [need_i('ex')], G3 + o['eread'])
    S.each('su', L, G3 + o['eread'], F0)
    for t in (P1, T1[4, 0], G0, P2, K0, G2, T2[1, 0], T2[8, 0], P0, CV, C1, G3, T3[7, 0], F0): stamp(t)

    P = Prog()
    P(f'.globl {label}\n.p2align 8\n.type {label},@function\n{label}:')
    for x in S.run(): P.add(x)
    P(f'{label}_end:\ns_endpgm')
    P.insert_waits(); P.pad_hazards(verbose=o.get('verbose', False))
    slow.pad_hazards(verbose=False)
    S.report(); print(' ', dict(P.count()), 'polls', polls)
    return P.text() + slow.text()

def write(path, aslist=False, **kw):
    o = dict(DEF); o.update(kw)
    label = NAME + '_kernel'
    body = build(label, o)
    hdr = f'; @launch {"kernel=" + label + " " if aslist else ""}grid=(256,1,1) block=(256,1,1) lds=163840\n'
    open(path, 'w').write(hdr + '.amdgcn_target "amdgcn-amd-amdhsa--gfx950"\n.text\n' + body + '.section .rodata,"a"\n.p2align 6\n' + desc(label, 512, 256))

if __name__ == '__main__':
    kw = {}
    for a in sys.argv[2:]:
        k, v = a.split('='); kw[k] = int(v)
    write(sys.argv[1], **kw)
```

```python
def hdr(a, name, nw, lds=0):
    a(f"; @launch kernel={name}_kernel grid=(256,1,1) block=({nw*64},1,1) lds={lds}")
    a('.amdgcn_target "amdgcn-amd-amdhsa--gfx950"')
    a(".text"); a(f".globl {name}_kernel"); a(".p2align 8"); a(f".type {name}_kernel,@function"); a(f"{name}_kernel:")
    a("s_cmp_ge_u32 s2, 256"); a("s_cbranch_scc1 L_end")
    a("s_load_dwordx4 s[4:7], s[0:1], 0")
    a("s_waitcnt lgkmcnt(0)")
    a("s_mov_b32 s8, s4"); a("s_and_b32 s9, s5, 0xffff"); a("s_mov_b32 s10, 0x4000000"); a("s_mov_b32 s11, 0x20000")
    a("s_mov_b32 s12, s6"); a("s_and_b32 s13, s7, 0xffff"); a("s_mov_b32 s14, 0x1000000"); a("s_mov_b32 s15, 0x20000")
def ftr(a, name, vg=256, acc=256):
    a("s_waitcnt lgkmcnt(0)")
    a("s_sub_u32 s34, s34, s32"); a("s_sub_u32 s38, s38, s36")
    a("v_mov_b32 v6, s34"); a("v_mov_b32 v7, s38")
    a("s_lshl_b32 s3, s2, 3"); a("v_mov_b32 v8, s3")
    a("buffer_store_dwordx2 v[6:7], v8, s[12:15], 0 offen")
    a("L_end:"); a("s_endpgm")
    a('.section .rodata,"a"'); a(".p2align 6"); a(f".amdhsa_kernel {name}_kernel")
    a(f".amdhsa_next_free_vgpr {vg}"); a(".amdhsa_next_free_sgpr 102"); a(f".amdhsa_accum_offset {acc}")
    a(".amdhsa_group_segment_fixed_size 0"); a(".amdhsa_kernarg_size 32"); a(".amdhsa_user_sgpr_count 2"); a(".amdhsa_user_sgpr_kernarg_segment_ptr 1"); a(".amdhsa_system_sgpr_workgroup_id_x 1"); a(".end_amdhsa_kernel")

def gen(name, n, passes, nfill=2, warm=False):
    o = []; a = o.append
    hdr(a, name, 4)
    for r in range(16, 64): a(f"v_mov_b32 v{r}, 0")
    if warm:
        a("s_getpc_b64 s[40:41]")
        a("v_lshlrev_b32 v1, 6, v0")
        nb = n * (8 + 8 * nfill)
        for i in range(0, nb, 256 * 64):
            a(f"global_load_dword v2, v1, s[40:41]")
            a(f"v_add_u32 v1, {256*64}, v1")
        a("s_waitcnt vmcnt(0)")
    a("s_mov_b32 s30, 0")
    a("s_barrier")
    a("L_pass:")
    a("s_memtime s[32:33]"); a("s_memrealtime s[36:37]")
    a(f".rept {n//4}")
    for j in range(4):
        a(f"v_mfma_f32_16x16x32_bf16 v[{16+4*j}:{19+4*j}], v[40:43], v[44:47], v[{16+4*j}:{19+4*j}]")
        for f in range(nfill):
            a(f"v_add3_u32 v{50+f}, v60, v61, v62")
    a(".endr")
    a("s_memtime s[34:35]"); a("s_memrealtime s[38:39]")
    a("s_waitcnt lgkmcnt(0)")
    a("s_add_u32 s30, s30, 1"); a(f"s_cmp_lt_u32 s30, {passes}")
    a("s_cbranch_scc0 L_out")
    a("s_getpc_b64 s[42:43]")
    a("L_here:")
    a("s_sub_u32 s42, s42, L_here-L_pass"); a("s_subb_u32 s43, s43, 0")
    a("s_setpc_b64 s[42:43]")
    a("L_out:")
    ftr(a, name)
    open(name + ".s", "w").write("\n".join(o) + "\n")
if __name__ == "__main__":
    gen("ic_1k_p1", 1024, 1)
    gen("ic_1k_p2", 1024, 2)
    gen("ic_2k_p1", 2048, 1)
    gen("ic_2k_p2", 2048, 2)
    gen("ic_2k_p1w", 2048, 1, warm=True)
    gen("ic_4k_p2", 4096, 2)
```

```python
import sys
from gen_ic import hdr, ftr
def gen(name, pat, iters=40, nm=56, big=False, bar=False, vmw=None, span=1<<20):
    o = []; a = o.append
    hdr(a, name, 4, lds=163840)
    a("v_lshrrev_b32 v1, 6, v0"); a("v_and_b32 v2, 63, v0"); a("s_nop 0"); a("v_readfirstlane_b32 s21, v1")
    a("v_lshlrev_b32 v3, 4, v2")
    a("v_lshlrev_b32 v4, 3, v2")
    a("s_lshl_b32 s22, s21, 13"); a("s_add_u32 s22, s22, 65536")
    a("s_and_b32 s23, s2, 7"); a(f"s_mul_i32 s23, s23, {span}")
    a("s_lshr_b32 s24, s2, 3"); a("s_and_b32 s24, s24, 7"); a("s_lshl_b32 s24, s24, 16"); a("s_lshl_b32 s25, s21, 12"); a("s_add_u32 s24, s24, s25")
    a(f"s_and_b32 s24, s24, {span-1}")
    for r in range(16, 256): a(f"v_mov_b32 v{r}, 0")
    for r in range(0, 64): a(f"v_accvgpr_write_b32 a{r}, 0")
    a("s_mov_b32 s30, 0"); a("s_mov_b32 m0, s22")
    a("s_barrier")
    a("s_memtime s[32:33]"); a("s_memrealtime s[36:37]")
    a("s_waitcnt lgkmcnt(0)")
    a("L_loop:")
    n = 0; nd = 0; nr = 0
    for g in range(nm):
        if big:
            acc = 128 + 16*(g % 7)
            a(f"v_mfma_f32_32x32x16_bf16 v[{acc}:{acc+15}], v[64:67], a[{4*(g%8)}:{4*(g%8)+3}], v[{acc}:{acc+15}]")
        else:
            acc = 128 + 4*(g % 14)
            a(f"v_mfma_f32_16x16x32_bf16 v[{acc}:{acc+3}], v[64:67], a[{4*(g%8)}:{4*(g%8)+3}], v[{acc}:{acc+3}]")
        for f in pat[g % len(pat)]:
            if f == "v": a(f"v_add_u32 v{100+n%8}, v51, v52"); n += 1
            if f == "u": a(f"v_add_u32 v50, v50, v52")
            if f == "3": a(f"v_add3_u32 v{100+n%8}, v51, v52, v53"); n += 1
            if f == "n": a("s_nop 0")
            if f == "s": a(f"s_add_u32 s40, s41, s42")
            if f == "w": a(f"s_waitcnt lgkmcnt(12)")
            if f == "t": a(f"ds_read_b64_tr_b16 v[{16+2*(nr%14)}:{17+2*(nr%14)}], v4 offset:{(nr%32)*512}"); nr += 1
            if f == "q": a(f"ds_read_b128 v[{16+4*(nr%7)}:{19+4*(nr%7)}], v3 offset:{(nr%32)*1024}"); nr += 1
            if f == "a": a(f"ds_read_b128 a[{32+4*(nr%7)}:{35+4*(nr%7)}], v3 offset:{(nr%32)*1024}"); nr += 1
            if f == "D":
                a(f"buffer_load_dwordx4 v5, s[8:11], s26 offen offset:{1024*(nd%4)} lds"); nd += 1
            if f == "L":
                a(f"buffer_load_dwordx4 v[{80+4*(nd%8)}:{83+4*(nd%8)}], v5, s[8:11], s26 offen offset:{1024*(nd%4)}"); nd += 1
            if f == "A":
                a(f"s_add_u32 s24, s24, 16384");
            if f == "B":
                a(f"s_and_b32 s24, s24, {span-1}")
            if f == "C":
                a(f"s_add_u32 s26, s23, s24")
    if nd: a(f"s_waitcnt vmcnt({nd if vmw is None else vmw})")
    if bar: a("s_waitcnt lgkmcnt(0)"); a("s_barrier")
    a("s_add_u32 s30, s30, 1"); a(f"s_cmp_lt_u32 s30, {iters}")
    a("s_cbranch_scc1 L_loop")
    a("s_memtime s[34:35]"); a("s_memrealtime s[38:39]")
    a("s_waitcnt vmcnt(0)")
    ftr(a, name, vg=512, acc=256)
    k = o.index("s_barrier")
    o[k:k] = ["v_mov_b32 v5, v3", "s_add_u32 s26, s23, s24"]
    open(name + ".s", "w").write("\n".join(o) + "\n")
    return name + ".s"
if __name__ == "__main__":
    L = []
    for spec in sys.argv[1:]:
        kw = {}
        p = spec
        if p.startswith('big:'): kw['big'] = True; kw['nm'] = 28; p = p[4:]
        if p.startswith('bar:'): kw['bar'] = True; p = p[4:]
        L.append(gen('g_' + spec.replace(',', '_').replace(':', '_'), p.split(','), **kw))
    print(' '.join('mb/' + x for x in L))
```

```python
from asmlib import *
from itertools import permutations
import re
INF = 1 << 30

def grp(x, tag=None):
    if isinstance(x, str): return [I(l, tag) for l in x.split('\n') if l.strip()]
    if isinstance(x, I): return [x]
    out = []
    for y in x: out += grp(y, tag)
    return out

class Clk:
    __slots__ = ('t', 'vf', 'mf', 'lv', 'ls', 'nds')
    def __init__(s): s.t = 0; s.vf = 0; s.mf = 0; s.lv = -9; s.ls = -9; s.nds = 0
    def copy(s):
        c = Clk(); c.t, c.vf, c.mf, c.lv, c.ls, c.nds = s.t, s.vf, s.mf, s.lv, s.ls, s.nds; return c
    def issue(s, x):
        k = x.kind
        if k == 'pseudo': return s.t
        if k == 'mfma':
            a = max(s.t, s.mf, s.vf); s.t = a + 1; s.mf = a + 4; s.vf = a + 2; s.nds = 0
        elif k == 'valu':
            a = max(s.t, s.vf); s.t = a + (2 if x.trans else 1); s.lv = s.t - 1
        elif k == 'ds':
            a = max(s.t, s.vf, s.lv + 3)
            if x.async_defs: s.t = a + 1 + (1 if s.nds else 0); s.nds += 1
            else: s.t = a + (5 if 'b128' in x.op else 3 if 'b64' in x.op else 2)
        elif k == 'vmem':
            a = max(s.t, s.vf, s.lv + 3, s.ls + 2)
            s.t = a + (2 if 'load' in x.op else 5 if 'x4' in x.op else 3)
        elif k == 'salu':
            a = s.t; s.t = a + 1; s.ls = a
        else:
            a = s.t; s.t = a + (5 if x.op == 's_barrier' else x.states() if x.op == 's_nop' else 1)
        return a

class Waits:
    def __init__(s, age): s.vm = []; s.lg = []; s.mf = 0; s.age = age
    def copy(s):
        c = Waits(s.age); c.vm = list(s.vm); c.lg = list(s.lg); c.mf = s.mf; return c
    def need(s, ins):
        if ins.kind == 'wait': return None
        touched = ins.tch; r = [None, None]
        for j, q in enumerate((s.vm, s.lg)):
            idx = -1
            for k, (x, mf) in enumerate(q):
                hit = False
                if x.async_defs and touched & x.dset:
                    hit = not (ins.cnt == x.cnt and ins.async_defs and ins.kind == x.kind and ins.kind != 'smem' and not (ins.uset & x.dset))
                if ins.need and x.tag in ins.need: hit = True
                if hit: idx = k
            if idx >= 0:
                if j == 1:
                    while idx + 1 < len(q) and q[idx + 1][1] <= s.mf - s.age: idx += 1
                n = len(q) - 1 - idx
                if j == 1 and any(x.kind == 'smem' for x, _ in q): n = 0
                r[j] = min(n, 63 if j == 0 else 15)
        if r == [None, None]: return None
        w = I('s_waitcnt' + (f' vmcnt({r[0]})' if r[0] is not None else '') + (f' lgkmcnt({r[1]})' if r[1] is not None else ''))
        return prep(w)
    def issue(s, ins):
        if ins.kind == 'wait':
            m = re.search(r'vmcnt\((\d+)\)', ins.text)
            if m: s.vm = s.vm[max(0, len(s.vm) - int(m.group(1))):] if int(m.group(1)) else []
            m = re.search(r'lgkmcnt\((\d+)\)', ins.text)
            if m:
                n = int(m.group(1))
                if n == 0: s.lg = []
                elif not any(x.kind == 'smem' for x, _ in s.lg): s.lg = s.lg[max(0, len(s.lg) - n):]
        elif ins.kind == 'mfma': s.mf += 1
        if ins.cnt == 'vm': s.vm.append((ins, s.mf))
        elif ins.cnt == 'lgkm': s.lg.append((ins, s.mf))

def prep(x):
    x.dset = set(x.defs); x.uset = set(x.uses); x.tch = x.dset | x.uset
    return x
def heavy(g): return sum(1 for x in g if x.kind in ('ds', 'vmem'))

class Sched:
    def __init__(self):
        self.m = []; self.cap = []; self.streams = {}; self.marks = {}; self.batches = []
    def n(self): return len(self.m)
    def mark(self, name): self.marks[name] = len(self.m)
    def main(self, text, cap=0, tag=None):
        for x in grp(text, tag):
            self.m.append(x); self.cap.append(cap if x.kind != 'pseudo' else 0)
    def mfma(self, text): self.main(text, 1)
    def add(self, stream, g, earliest, deadline=INF, tag=None, sep=False, soft=None):
        self.streams.setdefault(stream, []).append((grp(g, tag), earliest, deadline, sep, deadline if soft is None else max(min(soft, deadline), earliest + 1)))
    def each(self, stream, L, earliest, deadline=INF, tag=None, soft=None):
        G = grp(L, tag)
        for k, x in enumerate(G): self.add(stream, [x], earliest, deadline, soft=None if soft is None else soft[0] + ((k + 1)*(soft[1] - soft[0])) // len(G))
    def vm(self, batches, t0, t1, deadline=None, slack=4):
        n = sum(len(b) for b in batches); k = 0
        for b in batches:
            ent = []
            for g in b:
                e = t0 + (k * (t1 - t0)) // n; d = t1 if deadline is None else deadline
                ent.append((grp(g), e, d, True, min(d, e + slack), t0)); k += 1
            self.batches.append(ent)
    def run(self, age=6, filt=None, horizon=40):
        self.batches.sort(key=lambda b: b[0][1])
        self.streams['vm'] = [e for b in self.batches for e in b]
        q = {}
        for k, l in self.streams.items():
            d = INF; sd = INF; r = []
            for g, e, dl, sep, soft, *hard in reversed(l):
                d = min(d - (1 if sep and d < INF else 0), dl)
                sd = min(sd - (1 if heavy(g) and sd < INF else 0), soft, d)
                if hard: e = max(hard[0], min(e, d - 1))
                if filt: g = filt(g)
                for x in g: prep(x)
                r.append((g, e, d, sep, sd))
            q[k] = r
        main = [filt([x]) if filt else [x] for x in self.m]
        for g in main:
            for x in g: prep(x)
        out = []; clk = Clk(); wt = Waits(age); self.time = []; self.nfill = []
        def emit(g, c, w, o):
            for x in g:
                y = w.need(x)
                if y is not None:
                    w.issue(y); c.issue(y)
                    if o is not None: o.append(y)
                w.issue(x); c.issue(x)
                if o is not None: o.append(x)
        def best(picks, nxt):
            bst = None
            idx = range(len(picks))
            for p in (permutations(idx) if len(picks) <= 5 else [tuple(idx)]):
                ok = True
                for a in range(len(p)):
                    for b in range(a + 1, len(p)):
                        if picks[p[a]][0] == picks[p[b]][0] and p[a] > p[b]: ok = False
                if not ok: continue
                c = clk.copy(); w = wt.copy()
                for j in p: emit(picks[j][1], c, w, None)
                t = c.t
                if nxt is not None:
                    emit(nxt, c, w, None); t = c.t
                if bst is None or t < bst[0]: bst = (t, p)
            return bst
        MM = prep(I('v_mfma_f32_16x16x32_bf16 a[0:3], a[0:3], a[0:3], 0'))
        def alone(g):
            c = Clk(); c.issue(MM)
            for x in g: c.issue(x)
            return c.issue(MM) - 4
        N = len(self.m)
        for i in range(N):
            self.time.append(clk.t)
            emit(main[i], clk, wt, out)
            last = i == N - 1; ism = self.m[i].kind == 'mfma'
            if self.m[i].kind == 'pseudo' and not last:
                self.nfill.append(0); continue
            j = i + 1
            while j < N and self.m[j].kind == 'pseudo': j += 1
            nxt = [x for g in main[i+1:j+1] for x in g] if j < N else None
            if ism and nxt:
                for x in nxt:
                    y = wt.need(x)
                    if y is not None: wt.issue(y); clk.issue(y); out.append(y)
            picks = []; blocked = set(); extra = 0; ngr = 0
            base = best([], nxt)[0]
            while True:
                c = sorted((l[-1][4], l[-1][2], k) for k, l in q.items() if l and l[-1][1] <= i and (last or k not in blocked))
                pick = None
                for sd, dl, k in c:
                    g = q[k][-1][0]
                    if dl <= j or last or all(x.kind == 'pseudo' for x in g): pick = k; break
                if pick is None and self.cap[i]:
                    for sd, dl, k in c:
                        g = q[k][-1][0]
                        if not ism:
                            if ngr < self.cap[i]: pick = k; break
                            continue
                        t = best(picks + [(k, g)], nxt)[0]
                        if t <= base: pick = k; break
                        if not picks and alone(g) > 0: pick = k; break
                    if pick is None and ism and extra < 1:
                        dem = sorted(e[4] for k, l in q.items() for e in l[-horizon:] if heavy(e[0]) and e[4] <= i + horizon)
                        if any(d <= i + 1 + n_ for n_, d in enumerate(dem)):
                            cand = [(best(picks + [(k, q[k][-1][0])], nxt)[0], sd, k) for sd, dl, k in c if heavy(q[k][-1][0])]
                            cand = [x for x in cand if x[0] <= base + 1]
                            if cand: pick = min(cand, key=lambda x: x[1])[2]; extra += 1
                    if pick is None and ism and extra < 1:
                        cand = [(sd, k) for sd, dl, k in c if sd <= i + 1 and best(picks + [(k, q[k][-1][0])], nxt)[0] <= base + 2]
                        if cand: pick = min(cand)[1]; extra += 1
                if pick is None: break
                g, e, dl, sep, sd = q[pick].pop(); picks.append((pick, g)); ngr += 1
                base = max(base, best(picks, nxt)[0])
                if sep: blocked.add(pick)
            if picks:
                for p in best(picks, nxt)[1]: emit(picks[p][1], clk, wt, out)
            self.nfill.append(sum(len(g) for _, g in picks))
            for k, l in q.items():
                assert not l or l[-1][2] > j or last, f'stream {k}: deadline {l[-1][2]} missed at {i} (earliest {l[-1][1]}) {[x.text for x in l[-1][0]]}'
        self.time.append(clk.t)
        mer = []
        for x in out:
            k = len(mer) - 1
            while k >= 0 and mer[k].kind == 'pseudo' and not mer[k].is_label: k -= 1
            if x.kind == 'wait' and k >= 0 and mer[k].kind == 'wait':
                v = {}
                for y in (mer[k], x):
                    for nm, n_ in re.findall(r'(vmcnt|lgkmcnt)\((\d+)\)', y.text): v[nm] = min(int(n_), v.get(nm, 99))
                mer[k] = prep(I('s_waitcnt ' + ' '.join(f'{nm}({v[nm]})' for nm in ('vmcnt', 'lgkmcnt') if nm in v)))
            else: mer.append(x)
        out = mer
        seen = {}
        for n_, x in enumerate(out):
            if x.need:
                for t in x.need: seen.setdefault(t, n_)
            if x.tag in seen and x.cnt: print(f'  !! op after need of {x.tag}: {x.text}')
        tags = {x.tag for x in out if x.cnt}
        for t in seen:
            if t not in tags and not filt: print('  !! need without op', t)
        return out
    def report(self):
        ms = sorted(self.marks.items(), key=lambda kv: kv[1]) + [('end', len(self.m))]
        for (n, a), (_, b) in zip(ms, ms[1:]):
            nm = sum(1 for x in self.m[a:b] if x.kind == 'mfma')
            print(f'  {n:10s} main {b-a:5d} mfma {nm:4d} fill {sum(self.nfill[a:b]):5d} est {4*(self.time[b]-self.time[a]):6d}')
        print('  total est', 4*self.time[-1])
```

```python
import sys
from common import *
from sched3 import *

MF = 'v_mfma_f32_16x16x32_bf16'
SLAB = 28672; STG = 3 * SLAB; STGW = 17408; PAD = 8192; SLOT1 = 9216
MISC = STG + 4 * STGW; HREG = 65536; HW = 5120; UD = 4160
SLOT = [0, SLOT1]
W_STATS = 0x0000000
W_Z2S   = 0x0010000
W_ZFLAG = 0x0060000
W_PFLAG = 0x0061000
W_UFLAG = 0x0062000
W_YFLAG = 0x0063000
W_STAMP = 0x0080000
W_URT   = 0x0100000
W_YT    = 0x0500000
W_Z2F   = 0x0900000
W_PF    = 0x1800000
Q, WIN, WS, KK, VV, SH, SK_, DD, WSP, BSP, WO, OUT, DBG = 8, 12, 16, 20, 24, 28, 32, 36, 40, 44, 48, 52, 56
SRDS = [(Q, 0, 'q'), (WIN, 56, 'win'), (WS, 104, 'ws'), (DBG, 96, 'dbg'), (KK, 8, 'k'), (VV, 16, 'v'), (SH, 24, 'shift'), (SK_, 32, 'ssmk'),
        (DD, 40, 'D'), (WSP, 64, 'wsp'), (BSP, 72, 'bsp'), (WO, 80, 'wout'), (OUT, 88, 'out')]
def sr(x): return f's[{x}:{x+3}]'
def vr(a, n): return f'v[{a}:{a+n-1}]'
def ar(a, n): return f'a[{a}:{a+n-1}]'

DEF = dict(stamp=0, prefetch=1,
           nonce_ld=0, nonce_ck=70, stat_ld=6*63, stat_ck=7*63 + 8,
           z2s_ld=2*63, z2s_ck=3*63, zflag_lag=60, zpoll=7*63 + 40, zcheck=120,
           upoll=10*56, ucheck=12*56, pflag=90, ppoll=170, pcheck=215,
           ypoll=4*32, ycheck=6*32, eread=9*32,
           lat=6, bo1=7, bo2=7, bo3=1, pro=4, rot=3)

def reduce16(S):
    L = []
    for k in range(8): L.append(f'v_add_f32_dpp v{S+k}, v{S+k}, v{S+k} row_ror:8 row_mask:0xf bank_mask:0x3')
    for k in range(8): L.append(f'v_add_f32_dpp v{S+k}, v{S+k+8}, v{S+k+8} row_ror:8 row_mask:0xf bank_mask:0xc')
    for k in range(4): L.append(f'v_add_f32_dpp v{S+k}, v{S+k}, v{S+k} row_half_mirror row_mask:0xf bank_mask:0x5')
    for k in range(4): L.append(f'v_add_f32_dpp v{S+k}, v{S+k+4}, v{S+k+4} row_half_mirror row_mask:0xf bank_mask:0xa')
    for qp in ('[1,0,3,2]', '[2,3,0,1]'):
        for k in range(4): L.append(f'v_add_f32_dpp v{S+k}, v{S+k}, v{S+k} quad_perm:{qp} row_mask:0xf bank_mask:0xf')
    return L

def build(label, o):
    S = Sched(); slow = Prog()
    M = S.main
    ACC1, ACC2, WF = 16, 72, [128, 156]
    WV, LN16, XV, WR, XR, ONES, CSA = 184, 191, 192, 196, 200, 204, 208
    VDL, VZS, VN, VF, VST = 11, 12, 13, 14, 15
    nstamp = [0]; polls = []; clk = 's_memtime' if o['stamp'] == 2 else 's_memrealtime'
    def stamp(at):
        if not o['stamp']: return
        k = nstamp[0]; nstamp[0] += 1; s = 92
        S.add('stamp', f'{clk} s[{s}:{s+1}]', at, at + 1)
        S.add('stamp', f'v_writelane_b32 v{VST}, s{s}, {k}', at + 4, at + 5)
    def poll(name, loads, check):
        slow(f'{label}_{name}_slow:\ns_movk_i32 s101, 0x7fff\n{label}_{name}_loop:')
        for x in loads: slow(x)
        slow('s_waitcnt vmcnt(0)')
        if o['stamp']: slow(f'v_writelane_b32 v{VST}, s101, {16 + len(polls)}')
        polls.append(name)
        for x in check: slow(x)
        slow(f's_cbranch_vccz {label}_{name}_ok\ns_sub_u32 s101, s101, 1\ns_cmp_lg_u32 s101, 0\ns_cbranch_scc1 {label}_{name}_loop\ns_branch {label}_{name}_ok')
        return [f's_cbranch_vccnz {label}_{name}_slow', f'{label}_{name}_ok:']
    def tagcheck(base, n, t):
        L = [f'v_xor_b32 v{t}, s64, v{base}']
        for k in range(1, n): L.append(f'v_bitop3_b32 v{t}, v{t}, v{base+k}, s{64 + k%4} bitop3:0xf6')
        return L + [f'v_and_b32 v{t}, 0xff, v{t}'], f'v_cmp_ne_u32 vcc, 0, v{t}'
    def tagput(base): return [f'v_perm_b32 v{base+k}, v{base+k}, v{VN}, s{76+k}' for k in range(4)]

    S.mark('prologue')
    M(f's_cmp_ge_u32 s2, 256\ns_cbranch_scc1 {label}_end')
    for d, off, nm in SRDS: M(f's_load_dwordx2 s[{d}:{d+1}], s[0:1], {off}')
    M(f'{clk} s[92:93]')
    if o['stamp']: M(f'v_mov_b32 v{VST}, 0\nv_writelane_b32 v{VST}, s2, 31')
    if o.get('same'): M(f's_and_b32 s2, s2, {o["same"]}')
    M('v_lshrrev_b32 v1, 6, v0\nv_and_b32 v0, 63, v0\nv_readfirstlane_b32 s3, v1')
    M('v_and_b32 v1, 15, v0\nv_lshrrev_b32 v2, 4, v0')
    M('s_and_b32 s4, s2, 7\ns_lshr_b32 s5, s2, 3')
    if o['prefetch']:
        M(f's_getpc_b64 s[6:7]\n{label}_pc:\ns_lshl_b32 s70, s5, 11\ns_lshl_b32 s71, s3, 9\ns_add_u32 s70, s70, s71')
        M(f'v_lshlrev_b32 v3, 3, v0\nv_add_u32 v3, s70, v3\nv_min_u32 v3, {label}_end-{label}_pc-8, v3\nv_and_b32 v3, -4, v3')
        M('global_load_dwordx2 v[254:255], v3, s[6:7]')
    M('s_lshr_b32 s60, s4, 1\ns_lshl_b32 s60, s60, 2\ns_lshr_b32 s6, s5, 3\ns_add_u32 s60, s60, s6')
    M('s_and_b32 s61, s4, 1\ns_lshl_b32 s61, s61, 3\ns_and_b32 s6, s5, 7\ns_add_u32 s61, s61, s6')
    M('s_and_b32 s62, s61, 1')
    M('s_lshl_b32 s63, s60, 7\ns_lshl_b32 s6, s3, 5\ns_add_u32 s63, s63, s6')
    M(f's_mul_i32 s68, s3, {STGW}\ns_add_u32 s68, s68, {STG}\ns_mul_i32 s69, s3, 7168')
    M({3: 's_add_u32 s71, s60, s61', 2: 's_mov_b32 s71, s61', 1: 's_mov_b32 s71, s60', 0: 's_mov_b32 s71, 0', 4: 's_lshl_b32 s71, s60, 1'}[o['rot']])
    M('s_and_b32 s71, s71, 7\ns_mul_i32 s70, s71, 917504\ns_add_u32 s70, s70, 3584\ns_lshl_b32 s72, s71, 8')
    def xv_setup(RS, t0, t1):
        L = []
        for jj in range(4):
            L += [f'v_add_u32 v{t0}, s63, v2', f'v_add_u32 v{t0}, {8*jj}, v{t0}', f'v_mul_u32_u24 v{t0}, {RS}, v{t0}',
                  f'v_add_u32 v{t1}, {4*jj}, v2', f'v_xor_b32 v{t1}, v{t1}, v1', f'v_lshl_add_u32 v{t0}, v{t1}, 4, v{t0}',
                  f'v_subrev_u32 v{XV+jj}, {1024*jj}, v{t0}']
        return L
    M(xv_setup(2048, 3, 4))
    M('s_mul_i32 s4, s61, 224\ns_lshl_b32 s5, s3, 5\ns_lshl_b32 s6, s62, 1')
    for j in range(7):
        M(f'v_add_u32 v3, {64*j}, v0\nv_mul_u32_u24 v4, 4682, v3\nv_lshrrev_b32 v4, 16, v4')
        M(f'v_mul_u32_u24 v5, 14, v4\nv_sub_u32 v3, v3, v5\nv_add_u32 v3, s6, v3')
        M(f'v_subrev_u32 v5, 14, v3\nv_min_u32 v3, v3, v5\nv_lshlrev_b32 v3, 4, v3')
        M(f'v_and_b32 v5, 0x13, v4\nv_and_b32 v6, 4, v4\nv_lshl_or_b32 v5, v6, 1, v5\nv_bfe_u32 v6, v4, 3, 1\nv_lshl_or_b32 v5, v6, 2, v5')
        M(f'v_add_u32 v5, s5, v5\nv_mul_u32_u24 v5, 7168, v5\nv_add3_u32 v3, v3, v5, s4')
        M(f'v_subrev_u32 v{WV+j}, {1024*(j%4)}, v3')
    M(f'v_lshlrev_b32 v{LN16}, 4, v0')
    M('s_waitcnt lgkmcnt(0)')
    wsb = o.get('wsb', 0) << 20
    if wsb: M(f's_add_u32 s{WS}, s{WS}, {hx(wsb)}\ns_addc_u32 s{WS+1}, s{WS+1}, 0')
    for d, off, nm in SRDS: M(f's_and_b32 s{d+1}, s{d+1}, 0xffff\ns_mov_b32 s{d+2}, {hx(SIZE[nm] - (wsb if nm == "ws" else 0))}\ns_mov_b32 s{d+3}, 0x20000')
    M(f'v_min_u32 v{VF}, 1, v0\nv_lshlrev_b32 v{VF}, 30, v{VF}')
    if o['stamp']: M(f'v_writelane_b32 v{VST}, s92, 0'); nstamp[0] = 1
    M(f's_or_b32 s4, s2, s3\ns_cmp_lg_u32 s4, 0\ns_cbranch_scc1 {label}_nononce')
    M(f's_mul_i32 s4, s92, 0x9E3779B1\ns_or_b32 s4, s4, 1\nv_mov_b32 v3, s4')
    M(f'buffer_store_dword v3, v{VF}, {sr(DBG)}, 0 offen sc0 sc1')
    M(f'{label}_nononce:')

    def wdma(n):
        adv = ['s_add_u32 s71, s71, 1', 's_and_b32 s71, s71, 7', 's_mul_i32 s70, s71, 917504'] + (['s_add_u32 s70, s70, 3584'] if n < 7 else [])
        ld = lambda j: grp(f'buffer_load_dwordx4 v{WV+j}, {sr(WIN)}, s70 offen offset:{1024*(j%4)} lds', f'W{n}')
        return [[f's_add_u32 m0, s69, {SLAB*(n%3)}'] + [ld(j) for j in range(4)],
                [f's_add_u32 m0, s69, {SLAB*(n%3) + 4096}'] + [ld(j) for j in range(4, 7)] + (adv if n < 15 else [])]
    def udma(xv, srd, slot, tag, pre, adv, first=None):
        ld = lambda j: grp(f'buffer_load_dwordx4 v{xv + j%4}, {sr(srd)}, s{72 if j < 4 else 73} offen offset:{1024*(j%4)} lds', tag)
        return [[([first] if first else []) + grp(f's_add_u32 m0, s68, {SLOT[slot]}'), pre] + [ld(j) for j in range(4)],
                [f's_add_u32 m0, s68, {SLOT[slot] + 4096}'] + [ld(j) for j in range(4, 8)] + adv]
    def xdma(n): return udma(XV, Q, n % 2, f'X{n}', 's_add_u32 s73, s72, 8192',
                             ['s_add_u32 s72, s72, 256', 's_and_b32 s72, s72, 0x7ff'] if n < 7 else ['s_lshl_b32 s72, s60, 8'],
                             need_i(f'xr{n-2}') if n >= 2 else None)
    def sdma(u): return udma(XV, WSP, u % 2, f'S{u}', 's_add_u32 s73, s72, 16384',
                             ['s_add_u32 s72, s72, 256', 's_and_b32 s72, s72, 0xfff'] if u < 15 else ['s_lshl_b32 s72, s97, 18'],
                             need_i(f'xr{u+6}' if u < 2 else f'sr{u-2}'))
    def ureads(slot, ab, tag):
        return [(ks, grp(f'ds_read_b128 {ar(ab + 8*ks + 4*mt, 4)}, v{XR+ks} offset:{SLOT[slot] + 4096*mt}', tag)) for ks in range(4) for mt in range(2)]
    def flat(B):
        out = []
        for b in B:
            for g in b: out += grp(g)
        return out
    def emit_dma(B):
        for x in flat(B): M([x])
    XS = 96
    M('s_lshl_b32 s4, s60, 7\ns_lshl_b32 s5, s61, 3\ns_add_u32 s4, s4, s5\ns_lshl_b32 s5, s3, 1\ns_add_u32 s4, s4, s5\ns_lshl_b32 s5, s4, 11')
    for j in range(4): M(f'buffer_load_dwordx4 {vr(XS+4*j, 4)}, v{LN16}, {sr(Q)}, s5 offen offset:{1024*j}')
    first5 = [xdma(0), wdma(0), xdma(1), wdma(1), wdma(2)]
    for B in first5[:o['pro']]: emit_dma(B)
    M(f's_lshl_b32 s82, s4, 3\ns_lshl_b32 s83, s63, 3')
    M(f's_lshl_b32 s85, s60, 14\ns_lshl_b32 s5, s3, 8\ns_add_u32 s85, s85, s5\ns_add_u32 s85, s85, {W_Z2S}\ns_lshl_b32 s5, s61, 10\ns_add_u32 s84, s85, s5')
    M(f's_lshl_b32 s4, s61, 6\ns_lshl_b32 s5, s60, 2\ns_add_u32 s5, s5, s3\ns_add_u32 s5, s5, s4')
    M(f's_lshl_b32 s86, s5, 13\ns_add_u32 s86, s86, {W_Z2F}\ns_add_u32 s87, s86, 4096')
    M(f's_lshl_b32 s88, s5, 2\ns_add_u32 s88, s88, {W_ZFLAG}')
    M(f's_add_u32 s4, s4, s3\ns_lshl_b32 s89, s4, 2\ns_add_u32 s89, s89, {W_ZFLAG}\ns_lshl_b32 s90, s4, 13\ns_add_u32 s90, s90, {W_Z2F}')
    M('s_add_u32 s74, s60, 1\ns_and_b32 s74, s74, 15\ns_lshl_b32 s74, s74, 15')
    for k in range(4): M(f's_mov_b32 s{76+k}, {hx(0x07060500 + k)}')
    M(f's_mov_b32 s80, 1.0\ns_mov_b32 s81, 1.0')
    M('s_and_b32 s4, s2, 7\ns_lshr_b32 s5, s2, 3')
    M('s_lshr_b32 s95, s4, 1\ns_lshl_b32 s95, s95, 3\ns_lshr_b32 s6, s5, 2\ns_add_u32 s95, s95, s6')
    M('s_and_b32 s7, s4, 1\ns_lshl_b32 s7, s7, 2\ns_and_b32 s6, s5, 3\ns_add_u32 s7, s7, s6')
    M('s_lshl_b32 s96, s7, 8\ns_lshl_b32 s6, s3, 6\ns_add_u32 s96, s96, s6')
    M('s_add_u32 s97, s95, s7\ns_cmp_ge_u32 s97, 28\ns_cselect_b32 s6, 28, 0\ns_sub_u32 s97, s97, s6\ns_cmp_ge_u32 s97, 14\ns_cselect_b32 s6, 14, 0\ns_sub_u32 s97, s97, s6')
    PFV = dict(w=119, s=120, t=121, k=122, v=122, o=123, h=124); PFS = dict(w=WIN, s=WSP, t=WSP, k=KK, v=VV, o=WO, h=SK_)
    pfl = [(x[0], int(x[1:])) for x in o['pf'].split(',')] if o.get('pf') else []
    if pfl:
        M('s_and_b32 s4, s2, 7\ns_lshr_b32 s5, s2, 3\ns_lshl_b32 s5, s5, 2\ns_add_u32 s5, s5, s3')
        M('v_lshrrev_b32 v125, 5, v0\nv_lshlrev_b32 v125, 30, v125\nv_lshl_add_u32 v126, v0, 7, v125')
        M('s_lshr_b32 s6, s4, 1\ns_lshl_b32 s6, s6, 7\ns_add_u32 s6, s6, s5\ns_and_b32 s7, s4, 1')
        M('v_mul_u32_u24 v3, 4682, v0\nv_lshrrev_b32 v3, 16, v3\nv_mul_u32_u24 v3, 5376, v3\nv_add_u32 v3, v3, v126')
        M('s_mul_i32 s92, s6, 14336\ns_mul_i32 s93, s7, 1792\ns_add_u32 s92, s92, s93\nv_add_u32 v119, s92, v3')
        M('v_lshrrev_b32 v3, 3, v0\nv_mul_u32_u24 v3, 1024, v3\nv_add_u32 v3, v3, v126')
        M('s_lshl_b32 s92, s6, 13\ns_lshl_b32 s93, s7, 10\ns_add_u32 s92, s92, s93\nv_add_u32 v123, s92, v3')
        M('s_lshr_b32 s6, s4, 1\ns_lshl_b32 s6, s6, 21\ns_lshl_b32 s92, s7, 7\ns_add_u32 s92, s92, s5\ns_lshl_b32 s92, s92, 13\ns_add_u32 s92, s92, s6')
        M('v_add_u32 v120, s92, v126\nv_add_u32 v121, 4096, v120')
        M('s_lshr_b32 s92, s2, 4\ns_lshl_b32 s92, s92, 2\ns_add_u32 s92, s92, s3\ns_lshl_b32 s92, s92, 16\ns_and_b32 s93, s2, 15\ns_lshl_b32 s93, s93, 7\ns_add_u32 s92, s92, s93')
        M('v_lshl_add_u32 v3, v0, 11, v125\nv_add_u32 v122, s92, v3')
        M('s_lshl_b32 s92, s2, 2\ns_add_u32 s92, s92, s3\ns_lshl_b32 s92, s92, 12\nv_add_u32 v124, s92, v126')
    pfi = lambda c: f'buffer_load_dword v127, v{PFV[c]}, {sr(PFS[c])}, 0 offen' + o.get('pfmod', '')
    for c, n in pfl:
        if n < 0: M(pfi(c))
    M('v_xor_b32 v3, v1, v2\nv_lshlrev_b32 v3, 4, v3\nv_lshl_add_u32 v3, v1, 8, v3')
    M('v_lshrrev_b32 v5, 5, v0\nv_lshlrev_b32 v5, 4, v5\nv_bfe_u32 v4, v0, 4, 1\nv_lshl_add_u32 v5, v4, 2, v5\nv_bfe_u32 v4, v0, 2, 2\nv_add_u32 v5, v5, v4')
    M(f'v_mul_u32_u24 v5, 224, v5\nv_and_b32 v4, 3, v0\nv_lshl_add_u32 v5, v4, 3, v5\nv_sub_u32 v{VDL}, v{LN16}, v5')
    for ks in range(4):
        M(f's_add_u32 s4, s3, {ks}\ns_and_b32 s4, s4, 3\ns_lshl_b32 s5, s4, 6\ns_mul_i32 s4, s4, 7168')
        M(f'v_xor_b32 v4, s5, v3\nv_add_u32 v{XR+ks}, s68, v4\nv_add_u32 v{WR+ks}, s4, v5')
    for e in range(4): M(f'v_mov_b32 v{ONES+e}, 0x3f803f80')
    M(f'v_lshlrev_b32 v{VZS}, 10, v1\nv_lshl_add_u32 v{VZS}, v2, 6, v{VZS}')
    def wreads(n, ks):
        b = WF[ks % 2]
        return [grp(f'ds_read_b64_tr_b16 {vr(b+4*ft+2*h, 2)}, v{WR+ks} offset:{SLAB*(n%3) + 8*h*224 + 32*ft}', f'wr{n}') for ft in range(7) for h in range(2)]
    L = []
    for rr in range(2):
        s_, q_ = 112 + rr, 114 + rr
        for j in range(8):
            r = XS + 8*rr + j
            L += [f'v_lshlrev_b32 v116, 16, v{r}', f'v_and_b32 v117, 0xffff0000, v{r}']
            if j == 0: L += [f'v_add_f32 v{s_}, v116, v117', f'v_mul_f32 v{q_}, v116, v116', f'v_fmac_f32 v{q_}, v117, v117']
            else: L += [f'v_add_f32 v{s_}, v{s_}, v116', f'v_fmac_f32 v{q_}, v116, v116', f'v_add_f32 v{s_}, v{s_}, v117', f'v_fmac_f32 v{q_}, v117, v117']
    for mod in ('row_ror:8 row_mask:0xf', 'row_ror:4 row_mask:0xf', 'row_ror:2 row_mask:0xf', 'row_ror:1 row_mask:0xf', 'row_bcast:15 row_mask:0xa', 'row_bcast:31 row_mask:0xc'):
        L += [f'v_add_f32_dpp v{r}, v{r}, v{r} {mod} bank_mask:0xf' for r in range(112, 116)]
    c = hx(f2u(1/1024))
    L += [f'v_mul_f32 v{r}, {c}, v{r}' for r in range(112, 116)]
    L += [f'v_fma_f32 v{114+k}, -v{112+k}, v{112+k}, v{114+k}' for k in range(2)]
    L += [f'v_max_f32 v{114+k}, 0, v{114+k}' for k in range(2)]
    L += [f'v_add_f32 v{114+k}, {hx(f2u(1e-5))}, v{114+k}' for k in range(2)]
    L += [f'v_rsq_f32 v{114+k}, v{114+k}' for k in range(2)]
    L += ['v_sub_u32 v116, 63, v0', 'v_min_u32 v116, 1, v116', 'v_lshlrev_b32 v116, 30, v116', 'v_mov_b32 v117, 0']
    M([x.replace('v117', 'v118') for x in L[:-1]] + L[-1:])
    M([need_i('W0')]); M('s_barrier'); M([need_i('X0')])
    for ks, g in ureads(0, 0, 'xr0'): M(g)
    for g in wreads(0, 0): M(g)

    T1 = {}
    def gemm1(n0, n1):
        for n in range(n0, n1):
            ps = n // 8
            for ks in range(4):
                T1[n, ks] = S.n()
                for ft in range(7):
                    w = vr(WF[ks % 2] + 4*ft, 4)
                    for mt in range(2):
                        a = vr((ACC1, ACC2)[ps] + 8*ft + 4*mt, 4); x = ar(32*(n%8) + 8*ks + 4*mt, 4)
                        S.mfma(f'{MF} {a}, ' + (f'{x}, {w}' if ps == 0 else f'{w}, {x}') + f', {"0" if n%8 == 0 and ks == 0 else a}')
                    if ks == 0:
                        a = vr(CSA + 4*ft, 4); x = vr(ONES, 4)
                        S.mfma(f'{MF} {a}, ' + (f'{x}, {w}' if ps == 0 else f'{w}, {x}') + f', {"0" if n%8 == 0 else a}')
    use1 = lambda n, ks, ft: T1[n, ks] + (3 if ks == 0 else 2)*ft
    S.mark('pass1'); gemm1(0, 8)
    S.mark('gelu2'); G0 = S.n()
    SG, RA1, RA2, TP, SUM, CS1 = 72, 88, 96, 104, 112, 236
    for ft in range(7):
        a = [vr(ACC1 + 8*ft + 2*p, 2) for p in range(4)]; t = [vr(TP + 2*p, 2) for p in range(4)]
        cs = vr(CS1 + (ft & ~1), 2); sel = f'op_sel:[0,{ft&1},0] op_sel_hi:[1,{ft&1},1]'
        L = [f'v_pk_fma_f32 {a[p]}, {vr(SG+4*p, 2)}, {cs}, {a[p]} {sel} neg_lo:[1,0,0] neg_hi:[1,0,0]' for p in range(4)]
        L += [f'v_pk_mul_f32 {t[p]}, {a[p]}, {a[p]}' for p in range(4)]
        L += [f'v_pk_fma_f32 {t[p]}, {t[p]}, {vr(RA2+2*p, 2)}, {vr(RA1+2*p, 2)}' for p in range(4)]
        L += [f'v_pk_mul_f32 {t[p]}, {t[p]}, {a[p]}' for p in range(4)]
        L += [f'v_exp_f32 v{TP+e}, v{TP+e}' for e in range(8)]
        L += [f'v_pk_add_f32 {t[p]}, {t[p]}, s[80:81]' for p in range(4)]
        L += [f'v_rcp_f32 v{TP+e}, v{TP+e}' for e in range(8)]
        L += [f'v_pk_mul_f32 {a[p]}, {a[p]}, {t[p]}' for p in range(4)]
        if ft == 0:
            L += [f'v_pk_mul_f32 {vr(SUM+4*p, 2)}, {a[p]}, s[80:81]' for p in range(4)]
            L += [f'v_pk_mul_f32 {vr(SUM+4*p+2, 2)}, {a[p]}, {a[p]}' for p in range(4)]
        else:
            L += [f'v_pk_add_f32 {vr(SUM+4*p, 2)}, {vr(SUM+4*p, 2)}, {a[p]}' for p in range(4)]
            L += [f'v_pk_fma_f32 {vr(SUM+4*p+2, 2)}, {a[p]}, {a[p]}, {vr(SUM+4*p+2, 2)}' for p in range(4)]
        for k, x in enumerate(L): M(x, cap=1 if k % 4 == 3 else 0)
    G1 = S.n()
    M(reduce16(SUM)); M(tagput(SUM)); M('v_lshlrev_b32 v3, 2, v0')
    M('s_mov_b32 exec_lo, 0x11111111\ns_mov_b32 exec_hi, 0x11111111')
    M(f'buffer_store_dwordx4 {vr(SUM, 4)}, v3, {sr(WS)}, s84 offen sc1')
    M('s_mov_b64 exec, -1')
    S.mark('pass2'); gemm1(8, 16)
    S.mark('kv'); K0 = S.n()
    KR = [ACC1 + 8*j + 4 for j in range(7)]; VR_ = [236 + 4*j for j in range(4)]; SKR = [ACC1 + 8*j for j in range(4)]
    KU, VU = 156, 170; TAP = [50, 56, 58, 64]; OU = [178, 180, 182, 48]
    M(f's_lshl_b32 s4, s3, 11\ns_add_u32 s4, s4, {MISC}')
    M('v_lshrrev_b32 v4, 2, v0\nv_sub_u32 v4, 15, v4\nv_and_b32 v5, 3, v0\nv_lshrrev_b32 v6, 1, v4\nv_lshlrev_b32 v7, 1, v5\nv_xor_b32 v6, v6, v7')
    M('v_lshlrev_b32 v6, 4, v6\nv_and_b32 v4, 1, v4\nv_lshl_add_u32 v6, v4, 3, v6\nv_lshl_add_u32 v6, v5, 9, v6\nv_add_u32 v3, s4, v6')
    M('v_lshrrev_b32 v4, 5, v0\nv_and_b32 v5, 7, v0\nv_lshlrev_b32 v6, 1, v4\nv_xor_b32 v6, v6, v5\nv_lshrrev_b32 v7, 3, v0')
    M('v_lshlrev_b32 v6, 4, v6\nv_lshl_add_u32 v6, v7, 7, v6\nv_add_u32 v10, s4, v6')
    M(f'v_and_b32 v7, 3, v7\nv_lshl_add_u32 v7, v4, 3, v7\nv_lshlrev_b32 v7, 12, v7\nv_lshl_add_u32 v{VZS}, v5, 4, v7')
    M(f'v_xor_b32 v{VDL}, 64, v10')
    M('s_and_b32 s4, s2, 15\ns_lshl_b32 s4, s4, 1\ns_and_b32 s5, s3, 1\ns_add_u32 s4, s4, s5')
    M('s_lshr_b32 s5, s2, 4\ns_lshl_b32 s5, s5, 1\ns_lshr_b32 s6, s3, 1\ns_add_u32 s5, s5, s6')
    M(f's_lshl_b32 s6, s4, 5\ns_add_u32 s6, s6, s5\ns_lshl_b32 s6, s6, 2\ns_add_u32 s70, s6, {W_UFLAG}')
    M(f's_lshl_b32 s4, s4, 17\ns_lshl_b32 s5, s5, 7\ns_sub_u32 s4, s4, s5\ns_add_u32 s84, s4, {W_URT + 3968}\ns_add_u32 s85, s84, {16*4096}')
    for p in range(4):
        L = []
        for t_ in range(4):
            for c in range(2):
                src = SKR[p] + 2*c + t_//2
                L.append(f'v_lshlrev_b32 v{TAP[t_]+c}, 16, v{src}' if t_ % 2 == 0 else f'v_and_b32 v{TAP[t_]+c}, 0xffff0000, v{src}')
        for j in range(7): L += [f'v_lshlrev_b32 v{KU+2*j}, 16, v{KR[j]+p}', f'v_and_b32 v{KU+2*j+1}, 0xffff0000, v{KR[j]+p}']
        for j in range(4): L += [f'v_lshlrev_b32 v{VU+2*j}, 16, v{VR_[j]+p}', f'v_and_b32 v{VU+2*j+1}, 0xffff0000, v{VR_[j]+p}']
        for t_ in range(4):
            for r in range(4):
                k_ = vr(KU + 2*(r + t_), 2); tp = vr(TAP[3 - t_], 2); d = vr(OU[r], 2)
                L.append(f'v_pk_mul_f32 {d}, {k_}, {tp}' if t_ == 0 else f'v_pk_fma_f32 {d}, {k_}, {tp}, {d}')
        for r in range(4): L.append(f'v_pk_mul_f32 {vr(OU[r], 2)}, {vr(OU[r], 2)}, {vr(VU+2*r, 2)}')
        for c in range(2):
            L += [f'v_cvt_pk_bf16_f32 v{KU+2*c}, v{OU[3]+c}, v{OU[2]+c}', f'v_cvt_pk_bf16_f32 v{KU+2*c+1}, v{OU[1]+c}, v{OU[0]+c}']
        for c in range(2): L.append(f'ds_write_b64 v3, {vr(KU+2*c, 2)} offset:{128*(2*(p&1) + c)}')
        for k, x in enumerate(L): M(x, cap=1 if k % 4 == 3 else 0)
        ust = lambda b, b2: [f'buffer_store_dwordx4 {vr(b, 4)}, v{VZS}, {sr(WS)}, s84 offen sc1', f'buffer_store_dwordx4 {vr(b2, 4)}, v{VZS}, {sr(WS)}, s85 offen sc1']
        if p & 1:
            b, b2 = (SKR[0], SKR[1]) if p == 1 else (244, 248)
            M(f'ds_read_b128 {vr(b, 4)}, v10\nds_read_b128 {vr(b2, 4)}, v{VDL} offset:1024')
        if p == 2:
            M(ust(SKR[0], SKR[1]), tag='us'); M(f's_add_u32 s84, s84, {4*4096}\ns_add_u32 s85, s85, {4*4096}')
    S.mark('gemm2'); T2 = {}
    ZF = WF; ZR = WR
    for n in range(16):
        for ks in range(4):
            T2[n, ks] = S.n()
            for ft in range(7):
                for mt in range(2):
                    a = vr(ACC1 + 8*ft + 4*mt, 4)
                    S.mfma(f'{MF} {a}, {vr(ZF[ks%2] + 4*ft, 4)}, {ar(32*(n%8) + 8*ks + 4*mt, 4)}, {"0" if n == 0 and ks == 0 else a}')
    S.mark('pepi'); P0 = S.n()
    M1, RB, R1, ZV0, ZV1 = 184, 186, 188, 252, 253
    PO = ZF[0]
    for ft in range(7):
        L = []
        for mt in range(2):
            for h in range(2):
                a = vr(ACC1 + 8*ft + 4*mt + 2*h, 2)
                L.append(f'v_pk_fma_f32 {a}, {a}, {vr(R1, 2)}, {vr(RB, 2)} op_sel:[0,{mt},{mt}] op_sel_hi:[1,{mt},{mt}]')
        for k in range(4): L.append(f'v_pk_mul_f32 {vr(ACC1 + 8*ft + 2*k, 2)}, {vr(ACC1 + 8*ft + 2*k, 2)}, {vr(ACC2 + 8*ft + 2*k, 2)}')
        for mt in range(2):
            for h in range(2):
                a = ACC1 + 8*ft + 4*mt + 2*h
                L.append(f'v_cvt_pk_bf16_f32 v{PO + 8*(ft//2) + 4*mt + 2*(ft%2) + h}, v{a}, v{a+1}')
        M(L)
        if ft % 2 == 1:
            for mt in range(2): M(f'buffer_store_dwordx4 {vr(PO + 8*(ft//2) + 4*mt, 4)}, v{LN16}, {sr(WS)}, s82 offen offset:{1024*mt} sc1', tag='ps')
            M('s_add_u32 s82, s82, 4096')
        if ft == 6:
            for mt in range(2): M(f'buffer_store_dwordx2 {vr(PO + 24 + 4*mt, 2)}, v10, {sr(WS)}, s83 offen offset:{1024*mt} sc1', tag='ps')
    S.mark('conv')
    CA, FA, FB = 16, [48, 112], [80, 144]
    XV2, XR2, CVA, CVB, CVH, CVU, CVD = 244, 248, 4, 8, 250, 251, 9
    M([need_i('cvu')])
    for j in range(4):
        M(f'ds_read_b128 {vr(16+8*j, 4)}, v{CVU} offset:{1024*j}\nds_read_b32 v{20+8*j}, v{CVU} offset:{1024*j + 16}')
    for j in range(4):
        for d in range(4): M(f'v_alignbit_b32 v{16+8*j+d}, v{17+8*j+d}, v{16+8*j+d}, 16')
        M(f'ds_write_b128 v{CVU}, {vr(16+8*j, 4)} offset:{UD + 1024*j}')
    M([need_i('cvh')])
    def creads(rho):
        b = rho & 1; L = []
        for x in range(8):
            of = 16*rho + (128 if x % 2 == 0 else 0)
            L.append((x, f'ds_read_b128 {vr(FB[b]+4*x, 4)}, v{CVB} offset:{512*x + 64*rho}'))
            L.append((x, f'ds_read2_b32 {vr(FA[b]+4*x, 2)}, v{CVA + x//2} offset0:{of} offset1:{of+1}'))
            L.append((x, f'ds_read2_b32 {vr(FA[b]+4*x+2, 2)}, v{CVA + x//2} offset0:{of+2} offset1:{of+3}'))
        return L
    for x, g in creads(0): M(g)
    TC = {}
    for rho in range(8):
        b = rho & 1; first = set()
        for sidx in range(8):
            TC[rho, sidx] = S.n()
            for a in range(sidx + 1):
                for dl in range(sidx + 1):
                    if max(a, dl) == sidx and a + dl <= 7:
                        J = a + dl; c = vr(CA + 4*J, 4)
                        S.mfma(f'{MF} {c}, {vr(FA[b]+4*dl, 4)}, {vr(FB[b]+4*a, 4)}, {c if rho or J in first else "0"}')
                        first.add(J)
    S.mark('cvepi'); C1 = S.n()
    UB = 80
    M(f'v_lshlrev_b32 v{CVD}, 16, v{CVD}')
    for J in range(8):
        a = CA + 4*J
        M(f'v_and_b32 v100, 0xffff0000, v{UB+1+2*J}\nv_lshlrev_b32 v101, 16, v{UB+1+2*J}\nv_and_b32 v102, 0xffff0000, v{UB+2*J}\nv_lshlrev_b32 v103, 16, v{UB+2*J}')
        for h in range(2): M(f'v_pk_fma_f32 {vr(a+2*h, 2)}, {vr(100+2*h, 2)}, {vr(CVD-1, 2)}, {vr(a+2*h, 2)} op_sel:[0,1,0] op_sel_hi:[1,1,1]')
        M(f'v_cvt_pk_bf16_f32 v{a}, v{a}, v{a+1}\nv_cvt_pk_bf16_f32 v{a+1}, v{a+2}, v{a+3}', cap=1)
        M(f'ds_write_b64 v3, {vr(a, 2)} offset:{512*J}')
    for j in range(4): M(f'ds_read_b128 {vr(96+4*j, 4)}, v{CVH} offset:{1024*j}', tag='yb')
    YS = S.n()
    for j in range(4): M(f'buffer_store_dwordx4 {vr(96+4*j, 4)}, v{LN16}, {sr(WS)}, s86 offen offset:{1024*j} sc1', tag='ys')
    S.mark('gemm3'); T3 = {}
    A3, PFR = 16, [48, 64]
    for n in range(14):
        for ks in range(4):
            T3[n, ks] = S.n()
            for q in range(4):
                for dt in range(2):
                    a = vr(A3 + 8*q + 4*dt, 4)
                    S.mfma(f'{MF} {a}, {ar(32*(n%8) + 8*ks + 4*dt, 4)}, {vr(PFR[ks%2] + 4*q, 4)}, {"0" if n == 0 and ks == 0 else a}')
    S.mark('final'); F0 = S.n()
    E, XB, YB, ST, EV, XA, OA, YA = 128, 160, 112, 80, 88, 92, 94, 97
    for q in range(4):
        for dt in range(2):
            a = A3 + 8*q + 4*dt; e = E + 8*q + 4*dt
            for h in range(2): M(f'v_pk_add_f32 {vr(a+2*h, 2)}, {vr(a+2*h, 2)}, {vr(e+2*h, 2)}')
            M(f'v_cvt_pk_bf16_f32 v{a}, v{a}, v{a+1}\nv_cvt_pk_bf16_f32 v{a+1}, v{a+2}, v{a+3}')
            M(f'ds_write_b64 v{XA + q//2}, {vr(a, 2)} offset:{256*(q%2) + 32*dt}')
    for j in range(4): M(f'ds_read_b128 {vr(XB+4*j, 4)}, v{OA + max(0, j-1)} offset:{1024 if j == 1 else 0}')
    for j in range(4): M(f'buffer_store_dwordx4 {vr(XB+4*j, 4)}, v{EV+j}, {sr(OUT)}, s87 offen')
    if o['stamp']:
        M(f'{clk} s[92:93]\nv_writelane_b32 v{VST}, s92, 15\nv_readlane_b32 s2, v{VST}, 31')
        M(f's_lshl_b32 s4, s2, 2\ns_add_u32 s4, s4, s3\ns_lshl_b32 s4, s4, 7\ns_add_u32 s4, s4, {W_STAMP}\nv_lshlrev_b32 v3, 2, v0\ns_mov_b32 exec_hi, 0')
        M(f'buffer_store_dword v{VST}, v3, {sr(WS)}, s4 offen')

    bar = lambda *tags: [need_i(*tags), I('s_barrier')]
    LAT = o['lat']
    def zreads(n, ks):
        return [grp(f'ds_read_b128 {vr(ZF[ks%2] + 4*ft, 4)}, v{ZR+ks} offset:{SLAB*((n+1)%3) + 1024*ft}', f'zr{n}') for ft in range(7)]
    P1 = T1[0, 0]; P2 = T1[8, 0]; G2 = T2[0, 0]; CV = TC[0, 0]; G3 = T3[0, 0]
    tb1 = lambda n: T1[n, 3] + o['bo1']
    def last1(n, ks, ft):
        n, ks = (n, ks - 2) if ks >= 2 else (n - 1, ks + 2)
        return use1(n, ks, ft) + (2 if ks == 0 else 1) + 1 if n >= 0 else P1
    for n in range(16):
        for ks in range(4):
            n2, k2 = (n, ks + 1) if ks < 3 else (n + 1, 0)
            if n == 7 and ks == 2: S.add('rd', bar('csw'), T1[7, 2] + 3, T1[7, 2] + 4)
            if n2 < 16:
                if k2 == 0: S.add('rd', bar(f'W{n2}', f'wr{n}'), tb1(n), tb1(n) + 1)
                for q, g in enumerate(wreads(n2, k2)):
                    u_ = use1(n2, k2, q//2) if n2 != 8 or k2 else G0
                    S.add('rd', g, last1(n2, k2, q//2), u_, soft=min(u_, tb1(n2)) - LAT)
            else:
                S.each('rd', [f'v_add_u32 v{WR+k}, v{WR+k}, v{VDL}' for k in range(4)], T1[15, 2] - 1, tb1(15))
                S.add('rd', bar('wr15', 'zw', 'csw2'), tb1(15), tb1(15) + 1)
                for q, g in enumerate(zreads(0, 0)): S.add('rd', g, tb1(15), K0)
        B = (wdma(n + 3) if n + 3 < 16 else []) + (xdma(n + 3) if n + 3 < 8 else [])
        B = [[pfi(c)] for c, n_ in pfl if n_ == n] + B
        if B: S.vm(B, tb1(n) + 1, tb1(n + 1) + 1 if n != 7 else G0 + 100)
        if n + 1 < 8:
            for q, (ks, g) in enumerate(ureads((n + 1) % 2, 32*(n + 1), f'xr{n+1}')):
                S.add('xr', ([need_i(f'X{n+1}')] if q == 0 else []) + g, tb1(n) - LAT - 1, tb1(n) + 4, soft=tb1(n) - LAT + q)
    S.vm([b for B in first5[o['pro']:4] for b in B] + xdma(2) + (wdma(2) if o['pro'] < 5 else []), P1, tb1(0) - 10 if o['pro'] < 4 else tb1(0) + 1)
    ld = [f'buffer_load_dword v{VN}, v117, {sr(DBG)}, 0 offen sc0 sc1']
    S.add('st', ld, P1 + o['nonce_ld'])
    ck = [f'v_cmp_eq_u32 vcc, 0, v{VN}']
    S.add('st', ck + poll('nonce', ld, ck), P1 + o['nonce_ck'])
    S.each('st', [f'v_readfirstlane_b32 s64, v{VN}'] + tagput(112), P1)
    S.add('st', f'buffer_store_dwordx4 v[112:115], v116, {sr(WS)}, s82 offen sc1', P1)
    S.each('st', ['s_lshr_b32 s65, s64, 8', 's_lshr_b32 s66, s64, 16', 's_lshr_b32 s67, s64, 24', 'v_lshlrev_b32 v116, 6, v2'], P1)
    ld = [f'buffer_load_dwordx4 {vr(SG+4*j, 4)}, v116, {sr(WS)}, s83 offen offset:{16*j} sc1' for j in range(4)]
    S.each('st', ld, P1 + o['stat_ld'])
    S.each('st', xv_setup(4096, 117, 118), tb1(5) + 1, soft=(tb1(5), tb1(6)))
    pre, cmp_ = tagcheck(SG, 16, 117)
    S.each('st', pre, P1 + o['stat_ck'], soft=(P1 + o['stat_ck'], P1 + o['stat_ck'] + 20))
    S.add('st', [cmp_] + poll('stat', ld, pre + [cmp_]), P1)
    S.each('st', ['v_lshrrev_b32 v117, 2, v1', 'v_lshl_add_u32 v116, v117, 4, v116'], P1)
    S.add('st', f'buffer_load_dwordx4 v[252:255], v116, {sr(WS)}, s83 offen sc1', P1)
    L = []
    for r in range(8):
        rr = SG + 4*(r//2) + 2 + r % 2
        L += [f'v_mul_f32 v{RA2+r}, v{rr}, v{rr}', f'v_mul_f32 v{RA1+r}, {hx(f2u(GELU_C1))}, v{rr}', f'v_mul_f32 v{RA2+r}, v{RA2+r}, v{rr}',
              f'v_mul_f32 v{RA2+r}, {hx(f2u(GELU_C2))}, v{RA2+r}']
    S.each('st', L, P1, G0, soft=(P1 + o['stat_ck'] + 20, G0))
    def cs_reduce(t):
        L = [f'ds_read_b128 {vr(t+4*w, 4)}, v5 offset:{STGW*w}' for w in range(4)]
        L += [f'v_add_f32 v{t+e}, v{t+e}, v{t+4+e}' for e in range(4)] + [f'v_add_f32 v{t+8+e}, v{t+8+e}, v{t+12+e}' for e in range(4)]
        L += [f'v_add_f32 v{t+e}, v{t+e}, v{t+8+e}' for e in range(4)]
        return L + [f'ds_write_b128 v6, {vr(t, 4)} offset:{PAD + 512}']
    S.each('cs', ['v_lshlrev_b32 v3, 2, v1', 'v_add_u32 v3, s68, v3', 'v_lshlrev_b32 v4, 4, v2', 'v_add_u32 v4, s68, v4',
                  f'v_and_b32 v6, 0x1f0, v{LN16}', f'v_add_u32 v5, {STG + PAD}, v6', 'v_add_u32 v6, s68, v6'], P1, T1[7, 1])
    S.each('cs', [f'ds_write_b32 v3, v{CSA+4*ft} offset:{PAD + 64*ft}' for ft in range(7)], T1[7, 1], T1[7, 2] - 1, tag='csw')
    S.each('cs', cs_reduce(CSA), T1[7, 2] + 4, G0)
    S.each('cs', [f'ds_read_b32 v{CS1+ft}, v3 offset:{PAD + 512 + 64*ft}' for ft in range(7)], T1[7, 2], G0)
    S.add('cs', ['s_mov_b32 exec_lo, 0x10001', 's_mov_b32 exec_hi, 0x10001'] + [f'ds_write_b128 v4, {vr(CSA+4*ft, 4)} offset:{PAD + 64*ft}' for ft in range(7)] +
          ['s_mov_b64 exec, -1'], T1[15, 1], T1[15, 3] - 1, tag='csw2')
    S.each('cs', cs_reduce(CSA), tb1(15) + 1, K0)
    S.each('cs', [f'ds_read_b128 {vr(CSA+4*ft, 4)}, v4 offset:{PAD + 512 + 64*ft}' for ft in range(7)], T1[15, 3], K0)
    S.vm(sdma(0), G0 + 100, G0 + 200); S.vm(sdma(1), G0 + 200, G0 + 300)
    def free_at(u):
        if u < 7: return T1[9 + u, 0]
        if u == 7: return K0
        return T2[u - 7, 0]
    for u in range(16):
        t0 = free_at(u)
        if u >= 8: t0 = max(t0, T2[o.get('sread', lambda u: u - 7)(u), 0])
        for q, (ks, g) in enumerate(ureads(u % 2, 32*(u % 8), f'sr{u}')):
            S.add('xr', ([need_i(f'S{u}')] if q == 0 else []) + g, t0, min(t0 + 24, T2[u, ks]), soft=t0 + 2*q + 2)
        if u + 2 < 16: S.vm(sdma(u + 2), t0 + 24, t0 + 76)
    PZ = 236
    ld = [f'buffer_load_dwordx4 {vr(PZ+4*j, 4)}, v{VZS}, {sr(WS)}, s85 offen offset:{16*j} sc1' for j in range(4)]
    S.each('z', ld, P2 + o['z2s_ld'])
    pre, cmp_ = tagcheck(PZ, 16, 7)
    zt = P2 + o['z2s_ck']; zr = o.get('zrate', 10)
    S.each('z', pre, zt, soft=(zt, zt + 17*zr//10)); zt += 17*zr//10
    S.add('z', [cmp_] + poll('z2s', ld, pre + [cmp_]), P2)
    c = hx(f2u(1/1792))
    L = reduce16(PZ) + [f'v_mul_f32 v{PZ+k}, {c}, v{PZ+k}' for k in range(4)]
    L += [f'v_mul_f32 v{7+k}, v{254+k}, v{254+k}' for k in range(2)]
    L += [f'v_fma_f32 v{PZ+2+k}, -v{PZ+k}, v{PZ+k}, v{PZ+2+k}' for k in range(2)]
    L += [f'v_max_f32 v{PZ+2+k}, 0, v{PZ+2+k}' for k in range(2)]
    L += [f'v_mul_f32 v{7+k}, v{7+k}, v{PZ+2+k}' for k in range(2)]
    L += [f'v_add_f32 v{7+k}, {hx(f2u(1e-5))}, v{7+k}' for k in range(2)]
    L += [f'v_rsq_f32 v{7+k}, v{7+k}' for k in range(2)]
    L += [f'v_mul_f32 v{7+k}, v{7+k}, v{254+k}' for k in range(2)]
    L += [f'v_mul_f32 v{9+k}, v{7+k}, v{PZ+k}' for k in range(2)]
    L += [f'v_mov_b32_dpp v{PZ+8+r}, v{7 + r%2} row_newbcast:{4*(r//2)} row_mask:0xf bank_mask:0xf' for r in range(8)]
    L += [f'v_mov_b32_dpp v{PZ+r}, v{9 + r%2} row_newbcast:{4*(r//2)} row_mask:0xf bank_mask:0xf' for r in range(8)]
    S.each('z', L, P2, soft=(zt, zt + len(L)*zr//10)); zt += len(L)*zr//10
    for ft in range(7):
        a = ACC1 + 8*ft
        S.each('z', [f'v_fma_f32 v{a+r}, v{a+r}, v{PZ+8+r}, -v{PZ+r}' for r in range(8)] +
               [f'v_cvt_pk_bf16_f32 v{a+k}, v{a+2*k}, v{a+2*k+1}' for k in range(4)], P2, soft=(zt, zt + 13*zr//10)); zt += 13*zr//10
        S.add('z', f'buffer_store_dwordx4 {vr(a, 4)}, v{LN16}, {sr(WS)}, s{86 + ft//4} offen offset:{1024*(ft%4)} sc1', P2, tag='zs')
    tz = zt
    S.each('z', ['s_lshr_b32 s4, s2, 4', 's_lshl_b32 s4, s4, 1', 's_lshr_b32 s5, s3, 1', 's_add_u32 s4, s4, s5', 's_lshl_b32 s4, s4, 17',
                 's_and_b32 s5, s2, 15', 's_lshl_b32 s5, s5, 1', 's_and_b32 s6, s3, 1', 's_add_u32 s5, s5, s6', 's_lshl_b32 s6, s5, 6', 's_add_u32 s4, s4, s6',
                 's_lshl_b32 s5, s5, 8',
                 'v_lshrrev_b32 v7, 2, v0', 'v_lshlrev_b32 v7, 13, v7', 'v_and_b32 v10, 3, v0', 'v_lshl_add_u32 v7, v10, 4, v7', 'v_add_u32 v7, s4, v7',
                 'v_subrev_u32 v8, 6144, v7', 'v_subrev_u32 v9, 2048, v7', 'v_lshlrev_b32 v10, 6, v10'], P2, soft=(tz, tz + 30))
    kld = lambda j, v, of: f'buffer_load_dwordx4 {vr(KR[j], 4)}, v{v}, {sr(KK)}, 0 offen offset:{of}'
    S.add('z', [need_i('zs'), I(f'buffer_store_dword v{VN}, v{VF}, {sr(WS)}, s88 offen sc1')], tz + o['zflag_lag'])
    S.each('z', [kld(0, 8, 0), kld(1, 8, 2048), kld(2, 9, 0), 'v_add_u32 v8, 4096, v7', kld(3, 7, 0), kld(4, 7, 2048), kld(5, 8, 0), kld(6, 8, 2048)] +
           [f'buffer_load_dwordx4 {vr(VR_[j], 4)}, v{7 + j//2}, {sr(VV)}, 0 offen offset:{2048*(j%2)}' for j in range(4)], P2)
    S.each('z', [f'v_add_u32 v9, s69, v{LN16}'] + [f'ds_write_b128 v9, {vr(ACC1 + 8*ft, 4)} offset:{SLAB + 1024*ft}' for ft in range(7)], tb1(13) + 1, T1[15, 3] - 1, tag='zw')
    S.each('z', [f'buffer_load_dwordx4 {vr(SKR[j], 4)}, v10, {sr(SH)}, s5 offen offset:{16*j}' for j in range(4)], P2, K0)
    S.each('z', ['v_lshrrev_b32 v7, 2, v1', 'v_lshlrev_b32 v8, 6, v7', 'v_bfe_u32 v9, v1, 1, 1', 'v_lshl_add_u32 v8, v9, 4, v8', 'v_and_b32 v9, 1, v1', f'v_lshl_add_u32 v190, v9, 2, v8',
                 'v_and_b32 v9, 3, v1', 'v_lshl_add_u32 v7, v7, 3, v9', 'v_add_u32 v7, s63, v7', 'v_lshlrev_b32 v7, 1, v7'] +
           [f'buffer_load_dword v{M1+mt}, v190, {sr(WS)}, s83 offen offset:{32*mt} sc1' for mt in range(2)] +
           [f'buffer_load_dword v{R1+mt}, v190, {sr(WS)}, s83 offen offset:{32*mt + 8} sc1' for mt in range(2)] +
           [f'buffer_load_ushort v{RB+mt}, v7, {sr(BSP)}, 0 offen offset:{8*mt}' for mt in range(2)], T1[13, 3], K0)
    def zdma(n, first=None):
        ld = lambda j: grp(f'buffer_load_dwordx4 v{ZVv[j//4]}, {sr(WS)}, s74 offen offset:{1024*(j%4)} sc1 lds', f'Z{n}')
        sl = SLAB*((n + 1) % 3)
        return [(first or []) + [f's_add_u32 m0, s69, {sl}'] + [ld(j) for j in range(4)],
                [f's_add_u32 m0, s69, {sl + 4096}'] + [ld(j) for j in range(4, 7)] + ['s_add_u32 s74, s74, 0x8000', 's_and_b32 s74, s74, 0x7ffff']]
    ZVv = [ZV0, ZV1]
    S.each('z', [f'v_add_u32 v{ZV0}, s90, v{LN16}', f'v_add_u32 v{ZV1}, 4096, v{ZV0}', 'v_lshlrev_b32 v254, 4, v1'], P2, K0)
    ld = [f'buffer_load_dword v255, v254, {sr(WS)}, s89 offen sc1']; ck = ['v_cmp_ne_u32 vcc, s64, v255']
    S.add('z', ld, P2 + o['zpoll'], K0 + 8)
    t0 = K0 + o['zcheck']
    S.vm(zdma(1, [ck + poll('zf', ld, ck)]), t0, t0 + 36); S.vm(zdma(2), t0 + 36, t0 + 72)
    tb2 = lambda n: T2[n, 3] + o['bo2']
    for n in range(16):
        for ks in range(4):
            n2, k2 = (n, ks + 1) if ks < 3 else (n + 1, 0)
            if k2 == 0: S.add('rd', bar(f'Z{n2}', f'zr{n}') if n2 < 16 else bar(f'zr{n}'), tb2(n), tb2(n) + 1)
            if n2 < 16:
                n0, k0 = (n2, k2 - 2) if k2 >= 2 else (n2 - 1, k2 + 2)
                for q, g in enumerate(zreads(n2, k2)):
                    S.add('rd', g, T2[n0, k0] + 2*q + 2 if n0 >= 0 else G2, T2[n2, k2] + 2*q, soft=min(T2[n2, k2] + 2*q, tb2(n2)) - LAT)
        if n + 3 < 16: S.vm(zdma(n + 3), tb2(n) + 1, tb2(n + 1) + 1, tb2(n + 1) + 20)
    A1, A2, TM = 204, 206, 236
    L = [f'v_lshlrev_b32 v{RB+mt}, 16, v{RB+mt}' for mt in range(2)]
    L += [f'v_mul_f32 v{A2+mt}, v{R1+mt}, v{R1+mt}' for mt in range(2)] + [f'v_mul_f32 v{A1+mt}, {hx(f2u(GELU_C1))}, v{R1+mt}' for mt in range(2)]
    L += [f'v_mul_f32 v{A2+mt}, v{A2+mt}, v{R1+mt}' for mt in range(2)] + [f'v_mul_f32 v{RB+mt}, v{RB+mt}, v{R1+mt}' for mt in range(2)]
    L += [f'v_mul_f32 v{A2+mt}, {hx(f2u(GELU_C2))}, v{A2+mt}' for mt in range(2)]
    for ft in range(7):
        for mt in range(2):
            a = [ACC2 + 8*ft + 4*mt + e for e in range(4)]; t = [TM + e for e in range(4)]
            L += [f'v_fma_f32 v{a[e]}, -v{M1+mt}, v{CSA+4*ft+e}, v{a[e]}' for e in range(4)]
            L += [f'v_mul_f32 v{t[e]}, v{a[e]}, v{a[e]}' for e in range(4)]
            L += [f'v_fma_f32 v{t[e]}, v{t[e]}, v{A2+mt}, v{A1+mt}' for e in range(4)]
            L += [f'v_mul_f32 v{t[e]}, v{t[e]}, v{a[e]}' for e in range(4)]
            L += [f'v_exp_f32 v{t[e]}, v{t[e]}' for e in range(4)]
            L += [f'v_add_f32 v{t[e]}, 1.0, v{t[e]}' for e in range(4)]
            L += [f'v_rcp_f32 v{t[e]}, v{t[e]}' for e in range(4)]
            L += [f'v_mul_f32 v{a[e]}, v{a[e]}, v{t[e]}' for e in range(4)]
    S.each('g1', L + [f'v_mov_b32 v{208+e}, 0' for e in range(4)], G2 + 4, T2[14, 0], soft=(G2 + 4, T2[14, 0]))
    S.add('g1', [need_i('or5')] + grp(['s_mov_b64 exec, 0x3fffffff', f'ds_write_b128 v{CVH}, v[208:211]', 's_mov_b64 exec, 0xf',
                 f'ds_write_b128 v{CVU}, v[208:211] offset:4096', f'ds_write_b128 v{CVU}, v[208:211] offset:{UD + 4096}', 's_mov_b64 exec, -1']), T2[14, 0] + 44, P0)
    S.each('su', ust(244, 248), G2, tag='us')
    L = ['s_lshl_b32 s4, s2, 2', 's_add_u32 s4, s4, s3',
         's_lshl_b32 s71, s4, 12', f's_add_u32 s75, s71, {W_URT}', f's_add_u32 s86, s71, {W_YT}',
         's_lshl_b32 s98, s4, 2', f's_add_u32 s98, s98, {W_YFLAG}',
         's_lshr_b32 s94, s4, 5', 's_lshl_b32 s94, s94, 7', f's_add_u32 s94, s94, {W_UFLAG}',
         's_lshl_b32 s4, s4, 1', f'v_mov_b32 v{CVD}, 0', f'buffer_load_ushort v{CVD}, v{CVD}, {sr(DD)}, s4 offen',
         's_lshl_b32 s4, s60, 1', 's_lshr_b32 s5, s3, 1', 's_add_u32 s4, s4, s5',
         's_lshl_b32 s88, s4, 7', 's_lshl_b32 s5, s61, 3', 's_add_u32 s88, s88, s5', 's_and_b32 s6, s3, 1', 's_lshl_b32 s5, s6, 2', 's_add_u32 s88, s88, s5',
         f's_add_u32 s88, s88, {W_PFLAG}',
         's_mul_i32 s4, s4, 56', 's_lshr_b32 s5, s61, 1', 's_mul_i32 s5, s5, 7', 's_add_u32 s4, s4, s5', 's_lshl_b32 s4, s4, 12',
         's_lshl_b32 s6, s6, 11', 's_add_u32 s4, s4, s6', f's_add_u32 s4, s4, {W_PF}', 's_add_u32 s83, s4, 12288', 's_lshl_b32 s5, s62, 14', 's_add_u32 s82, s4, s5',
         's_lshl_b32 s5, s62, 3', f'v_add_u32 v10, s5, v{LN16}',
         's_lshl_b32 s87, s95, 17', 's_lshl_b32 s91, s95, 7', f's_add_u32 s91, s91, {W_PFLAG}',
         's_lshl_b32 s99, s96, 1', f's_add_u32 s99, s99, {W_YFLAG}',
         's_lshl_b32 s100, s96, 11', 's_lshl_b32 s5, s95, 7', 's_add_u32 s100, s100, s5', f's_add_u32 s100, s100, {W_YT}',
         's_lshl_b32 s60, s95, 9', 's_lshl_b32 s63, s3, 12', 's_lshl_b32 s90, s97, 14',
         f's_mul_i32 s4, s95, {56*4096}', 's_add_u32 s4, s4, s63', f's_add_u32 s4, s4, {W_PF}']
    S.each('su', L, G2, soft=(G2, G2 + 150))
    S.add('su', [need_i('us'), I(f'buffer_store_dword v{VN}, v{VF}, {sr(WS)}, s70 offen sc1')], G2 + 150)
    PVD = VZS
    L = [f'v_add_u32 v{PVD}, s4, v{LN16}',
         f's_mul_i32 s85, s3, {HW}', f's_add_u32 s85, s85, {HREG}', 's_lshl_b32 s84, s3, 11', f's_add_u32 s84, s84, {MISC}', f's_add_u32 s61, s68, {PAD}',
         f'v_add_u32 v{CVH}, s85, v{LN16}', f'v_add_u32 v{CVU}, s61, v{LN16}',
         'v_lshrrev_b32 v4, 2, v0', 'v_lshlrev_b32 v4, 11, v4', 'v_and_b32 v5, 3, v0', 'v_bfe_u32 v6, v0, 4, 1', 'v_lshlrev_b32 v6, 1, v6', 'v_xor_b32 v6, v5, v6',
         'v_lshlrev_b32 v6, 4, v6', f'v_add3_u32 v{XV2}, v4, v6, s96'] + [f'v_add_u32 v{XV2+j}, {31744*j}, v{XV2}' for j in range(1, 4)] + [
         'v_lshlrev_b32 v4, 2, v2', 'v_bfe_u32 v6, v0, 2, 2', 'v_add_u32 v4, v4, v6', 'v_lshlrev_b32 v4, 6, v4', 'v_lshl_add_u32 v4, v5, 3, v4',
         'v_and_b32 v6, 1, v2', 'v_lshl_add_u32 v4, v6, 5, v4', f'v_add_u32 v{XR2}, s68, v4', 'v_xor_b32 v4, 32, v4', f'v_add_u32 v{XR2+1}, s68, v4',
         'v_lshlrev_b32 v3, 5, v1', f'v_lshl_add_u32 v{CVB}, v2, 4, v3', f'v_add_u32 v{CVB}, s85, v{CVB}',
         'v_lshl_add_u32 v3, v2, 3, v3', f's_add_u32 s4, s61, {4088 - 3584}', f'v_sub_u32 v{VDL}, s4, v3', 'v_add_u32 v3, s85, v3',
         'v_sub_u32 v4, 1807, v1', 'v_lshrrev_b32 v4, 1, v4', 'v_lshlrev_b32 v4, 2, v4', 'v_lshl_add_u32 v4, v2, 4, v4',
         'v_and_b32 v5, 1, v1', f'v_mul_u32_u24 v5, {UD}, v5', 'v_sub_u32 v4, v4, v5', f's_add_u32 s4, s61, {UD - 512}', 'v_add_u32 v4, s4, v4',
         'v_subrev_u32 v5, 1024, v4', 'v_subrev_u32 v6, 2048, v4', 'v_subrev_u32 v7, 3072, v4',
         'v_and_b32 v254, 31, v0', 'v_lshlrev_b32 v254, 2, v254']
    S.each('su', L, G2 + 160, T2[7, 0], soft=(G2 + 160, T2[7, 0]))
    oslot = lambda j: j % 2 if j < 6 or j > 8 else 0
    oprev = {0: 'sr14', 1: 'sr15', 6: 'or4', 7: 'or6', 8: 'or7', 9: 'cu'}
    def odma(j): return udma(XV2, WO, oslot(j), f'O{j}', 's_add_u32 s73, s72, 0x20000',
                             ['s_add_u32 s72, s72, 0x40000', f's_cmp_eq_u32 s72, {hx(14 << 18)}\ns_cselect_b32 s72, 0, s72'], need_i(oprev.get(j, f'or{j-2}')))
    def oreads(j):
        return [(ks, grp(f'ds_read_b64_tr_b16 {ar(32*(j%8) + 8*ks + 4*dt + 2*h, 2)}, v{XR2+dt} offset:{SLOT[oslot(j)] + (32*ks + 16*h)*64}', f'or{j}'))
                for ks in range(4) for dt in range(2) for h in range(2)]
    ord_t = {j: T2[9 + j, 0] for j in range(7)}; ord_t[7] = CV + 110
    for j in range(8, 14): ord_t[j] = T3[2*j - 15, 0]
    RW = 48
    odm_t = {0: T2[7, 0] + 40, 1: T2[8, 0] + 40, 6: ord_t[4] + RW, 7: CV, 8: ord_t[7] + RW, 9: G3}
    for j in range(14):
        rw = RW if j < 8 else 24
        t0 = odm_t.get(j) if j in odm_t else ord_t[j - 2] + (RW if j < 10 else 24)
        t1 = t0 + (40 if j < 7 or j == 8 else 24)
        S.vm(odma(j), t0, t1, min(t1 + 20, ord_t[j]))
        for q, (ks, g) in enumerate(oreads(j)):
            S.add('xr', ([need_i(f'O{j}')] if q == 0 else []) + g, ord_t[j], min(ord_t[j] + rw, T3[j, ks]), soft=ord_t[j] + q*rw//16 + 2)
    ld = [f'buffer_load_dword v255, v254, {sr(WS)}, s94 offen sc1']
    S.add('su', ld, G2 + o['upoll'])
    S.add('su', ck + poll('uf', ld, ck), G2 + o['ucheck'], T2[14, 0])
    S.vm([['s_add_u32 m0, s85, 480'] + [grp(f'buffer_load_dwordx4 v{LN16}, {sr(SK_)}, s71 offen offset:{1024*j} lds', 'cvh') for j in range(4)]], tb2(13) + 1, tb2(13) + 20)
    S.vm([[[need_i('or5'), I('s_mov_b32 m0, s61')]] + [grp(f'buffer_load_dwordx4 v{LN16}, {sr(WS)}, s75 offen offset:{1024*j} sc1 lds', 'cvu') for j in range(4)]],
         ord_t[5] + RW, ord_t[5] + RW + 12)
    for rho in range(7):
        for x, g in creads(rho + 1): S.add('rd', g, TC[rho, 0] - 1, TC[rho + 1, x], tag='cu', soft=TC[rho + 1, x] - LAT)
    S.each('rd', [f'ds_read_b64 {vr(UB+2*J, 2)}, v{VDL} offset:{3584 - 512*J}' for J in range(8)], TC[7, 0], C1, tag='cu')
    S.add('su', [need_i('ps'), I(f'buffer_store_dword v{VN}, v{VF}, {sr(WS)}, s88 offen sc1')], CV + o['pflag'])
    ld = [f'buffer_load_dword v255, v254, {sr(WS)}, s91 offen sc1']
    S.add('su', ld, CV + o['ppoll'], CV + o['ppoll'] + 4)
    def pdma(n, first=None):
        return [(first or []) + [f's_add_u32 m0, s63, {16384*(n%4)}'] +
                [grp(f'buffer_load_dwordx4 v{PVD}, {sr(WS)}, s90 offen offset:{1024*j} sc1 lds', f'P{n}') for j in range(4)] +
                ['s_add_u32 s90, s90, 0x4000', f's_cmp_eq_u32 s90, {hx(14 << 14)}\ns_cselect_b32 s90, 0, s90']]
    t0 = CV + o['pcheck']
    S.vm(pdma(0, [ck + poll('pf', ld, ck)]), t0, t0 + 10)
    for n in range(1, 4): S.vm(pdma(n), t0 + 10*n, t0 + 10*n + 10)
    def preads(n, ks):
        return [grp(f'ds_read_b128 {vr(PFR[ks%2] + 4*q, 4)}, v{LN16} offset:{16384*(n%4) + 4096*ks + 1024*q}', f'pr{n}') for q in range(4)]
    S.add('rd', [need_i('P0'), I('s_barrier')], YS - 1, YS)
    for g in preads(0, 0): S.add('rd', g, YS - 1, YS)
    tb3 = lambda n: T3[n, 3] + o['bo3']
    for n in range(14):
        for ks in range(4):
            n2, k2 = (n, ks + 1) if ks < 3 else (n + 1, 0)
            if n2 < 14:
                if k2 == 0: S.add('rd', bar(f'P{n2}', f'pr{n}'), tb3(n), tb3(n) + 1)
                n0, k0 = (n2, k2 - 2) if k2 >= 2 else (n2 - 1, k2 + 2)
                for q, g in enumerate(preads(n2, k2)):
                    S.add('rd', g, T3[n0, k0] + 2*q + 2 if n0 >= 0 else G3, T3[n2, k2] + 2*q, soft=min(T3[n2, k2] + 2*q, tb3(n2)) - LAT)
        if n + 4 < 14: S.vm(pdma(n + 4), tb3(n) + 1, tb3(n + 1) + 1, tb3(n + 1) + 20)
    L = ['v_lshrrev_b32 v4, 2, v0', 'v_lshlrev_b32 v4, 11, v4', 'v_and_b32 v5, 3, v0', 'v_lshlrev_b32 v6, 4, v5', f'v_add3_u32 v{EV}, v4, v6, s96'] + \
        [f'v_add_u32 v{EV+j}, {32768*j}, v{EV}' for j in range(1, 4)] + [
         's_add_u32 s4, s85, 4096', f'v_add_u32 v{OA}, s84, v{LN16}', f'v_add_u32 v{OA+1}, s4, v{LN16}', f'v_add_u32 v{OA+2}, s61, v{LN16}',
         'v_bfe_u32 v4, v1, 2, 1', 'v_lshlrev_b32 v4, 3, v4', 'v_and_b32 v6, 3, v1', 'v_add_u32 v4, v4, v6', 'v_lshlrev_b32 v4, 6, v4', 'v_lshl_add_u32 v4, v2, 3, v4',
         'v_lshrrev_b32 v6, 3, v1', f'v_lshl_add_u32 v{XA}, v6, 10, v4', f'v_add_u32 v{XA}, s84, v{XA}',
         's_sub_u32 s5, s61, s4', 'v_mul_lo_u32 v6, v6, s5', f'v_add3_u32 v{XA+1}, v6, v4, s4',
         'v_lshlrev_b32 v4, 2, v2', 'v_bfe_u32 v6, v0, 2, 2', 'v_add_u32 v4, v4, v6', 'v_lshlrev_b32 v4, 7, v4', 'v_lshl_add_u32 v4, v5, 4, v4', f'v_add_u32 v{YA}, s85, v4',
         'v_lshrrev_b32 v4, 3, v0', 'v_lshlrev_b32 v4, 12, v4', 'v_and_b32 v5, 7, v0', 'v_lshl_add_u32 v98, v5, 4, v4'] + \
        [f'v_add_u32 v{98+j}, {31744*j}, v98' for j in range(1, 4)] + \
        [f'buffer_load_dword v{ST + 2*q + k}, v190, {sr(WS)}, s60 offen offset:{256*(q//2) + 32*(q%2) + 8*k} sc1' for q in range(4) for k in range(2)]
    S.each('su', L, G3 + 2, T3[3, 0], soft=(G3, T3[3, 0]))
    S.add('su', [need_i('ys'), I(f'buffer_store_dword v{VN}, v{VF}, {sr(WS)}, s98 offen sc1')], G3 + o.get('yflag', 70))
    xm = ['s_mov_b32 m0, s84', 's_add_u32 m0, s84, 1024', 's_add_u32 m0, s85, 4096', 's_mov_b32 m0, s61']
    S.vm([[xm[j], grp(f'buffer_load_dwordx4 v{EV+j}, {sr(Q)}, s87 offen lds', 'ex')] for j in range(4)], T3[3, 0], T3[4, 0], T3[5, 0])
    ld = [f'buffer_load_dword v255, v254, {sr(WS)}, s99 offen sc1']
    S.add('su', ld, G3 + o['ypoll'], G3 + o['ypoll'] + 4)
    S.vm([[ck + poll('yf', ld, ck), 's_mov_b32 m0, s85'] + [grp(f'buffer_load_dwordx4 v{98+j}, {sr(WS)}, s100 offen offset:{1024*j} sc1 lds', 'ex') for j in range(4)]],
         G3 + o['ycheck'], G3 + o['ycheck'] + 16, G3 + o['ycheck'] + 40)
    L = []
    for q in range(4):
        for dt in range(2):
            k = 2*q + dt
            L += [f'ds_read_b64 {vr(XB+2*k, 2)}, v{XA + q//2} offset:{256*(q%2) + 32*dt}', f'ds_read_b64_tr_b16 {vr(YB+2*k, 2)}, v{YA} offset:{2048*dt + 64*(q//2) + 8*(q%2)}']
    L += [f'v_mul_f32 v{ST+2*q}, v{ST+2*q}, v{ST+2*q+1}' for q in range(4)]
    for q in range(4):
        for dt in range(2):
            k = 2*q + dt; e = E + 4*k; xb = XB + 2*k; yb = YB + 2*k
            L += [f'v_lshlrev_b32 v{e}, 16, v{xb}', f'v_and_b32 v{e+1}, 0xffff0000, v{xb}', f'v_lshlrev_b32 v{e+2}, 16, v{xb+1}', f'v_and_b32 v{e+3}, 0xffff0000, v{xb+1}']
            L += [f'v_lshlrev_b32 v104, 16, v{yb}', f'v_and_b32 v105, 0xffff0000, v{yb}', f'v_lshlrev_b32 v106, 16, v{yb+1}', f'v_and_b32 v107, 0xffff0000, v{yb+1}']
            L += [f'v_fma_f32 v{108+r}, v{e+r}, v{ST+2*q+1}, -v{ST+2*q}' for r in range(4)]
            L += [f'v_fmac_f32 v{e+r}, v{108+r}, v{104+r}' for r in range(4)]
    S.add('su', [need_i('ex')], G3 + o['eread'])
    S.each('su', L, G3 + o['eread'], F0, soft=(G3 + o['eread'], F0))
    for t in (P1, T1[4, 0], G0, P2, K0, G2, T2[1, 0], T2[8, 0], P0, CV, C1, G3, T3[7, 0], F0): stamp(t)

    P = Prog()
    P(f'.globl {label}\n.p2align 8\n.type {label},@function\n{label}:')
    import re as _re
    def filt(g):
        r = []
        for x in g:
            if o.get('nodma') and getattr(x, 'isdma', False): continue
            if o.get('nowait') and x.need: x.need = [t for t in x.need if not _re.fullmatch(r'[WXSZOP]\d+|cvu|cvh|ex', t)]
            if o.get('nopoll') and x.op == 's_cbranch_vccnz': continue
            if o.get('drop') and _re.search(o['drop'], x.text): continue
            r.append(x)
        return r
    for x in S.run(age=o.get('age', 6), filt=filt): P.add(x)
    P(f'{label}_end:\ns_endpgm')
    n0 = len(P.items); P.insert_waits(age=99); print('  late waits', len(P.items) - n0)
    P.pad_hazards(verbose=o.get('verbose', False))
    slow.pad_hazards(verbose=False)
    S.report(); print(' ', dict(P.count()), 'polls', polls)
    return P.text() + slow.text()

def write(path, aslist=False, **kw):
    o = dict(DEF); o.update(kw)
    label = NAME + '_kernel'
    body = build(label, o)
    hdr = f'; @launch {"kernel=" + label + " " if aslist else ""}grid=(256,1,1) block=(256,1,1) lds=163840\n'
    open(path, 'w').write(hdr + '.amdgcn_target "amdgcn-amd-amdhsa--gfx950"\n.text\n' + body + '.section .rodata,"a"\n.p2align 6\n' + desc(label, 512, 256))

if __name__ == '__main__':
    kw = {}
    for a in sys.argv[2:]:
        k, v = a.split('=', 1); kw[k] = int(v) if v.lstrip('-').isdigit() else v
    write(sys.argv[1], **kw)
```

```python
import sys
from common import *
from sched3 import *

MF = 'v_mfma_f32_16x16x32_bf16'
SLAB = 28672; STG = 3 * SLAB; STGW = 17408; PAD = 8192; SLOT1 = 9216
MISC = STG + 4 * STGW; HREG = 65536; HW = 5120; UD = 4160
SLOT = [0, SLOT1]
W_STATS = 0x0000000
W_Z2S   = 0x0010000
W_ZFLAG = 0x0060000
W_PFLAG = 0x0061000
W_UFLAG = 0x0062000
W_YFLAG = 0x0063000
W_STAMP = 0x0080000
W_URT   = 0x0100000
W_YT    = 0x0500000
W_Z2F   = 0x0900000
W_PF    = 0x1800000
Q, WIN, WS, KK, VV, SH, SK_, DD, WSP, BSP, WO, OUT, DBG = 8, 12, 16, 20, 24, 28, 32, 36, 40, 44, 48, 52, 56
SRDS = [(Q, 0, 'q'), (WIN, 56, 'win'), (WS, 104, 'ws'), (DBG, 96, 'dbg'), (KK, 8, 'k'), (VV, 16, 'v'), (SH, 24, 'shift'), (SK_, 32, 'ssmk'),
        (DD, 40, 'D'), (WSP, 64, 'wsp'), (BSP, 72, 'bsp'), (WO, 80, 'wout'), (OUT, 88, 'out')]
def sr(x): return f's[{x}:{x+3}]'
def vr(a, n): return f'v[{a}:{a+n-1}]'
def ar(a, n): return f'a[{a}:{a+n-1}]'

DEF = dict(stamp=0, prefetch=1,
           nonce_ld=0, nonce_ck=70, stat_ld=6*63, stat_ck=7*63 + 8,
           z2s_ld=2*63, z2s_ck=3*63, zflag_lag=60, zpoll=7*63 + 40, zcheck=120,
           upoll=10*56, ucheck=12*56, pflag=90, ppoll=170, pcheck=215,
           ypoll=4*32, ycheck=6*32, eread=9*32,
           lat=6, bo1=7, bo2=7, bo3=1, pro=4, rot=3)

def reduce16(S):
    L = []
    for k in range(8): L.append(f'v_add_f32_dpp v{S+k}, v{S+k}, v{S+k} row_ror:8 row_mask:0xf bank_mask:0x3')
    for k in range(8): L.append(f'v_add_f32_dpp v{S+k}, v{S+k+8}, v{S+k+8} row_ror:8 row_mask:0xf bank_mask:0xc')
    for k in range(4): L.append(f'v_add_f32_dpp v{S+k}, v{S+k}, v{S+k} row_half_mirror row_mask:0xf bank_mask:0x5')
    for k in range(4): L.append(f'v_add_f32_dpp v{S+k}, v{S+k+4}, v{S+k+4} row_half_mirror row_mask:0xf bank_mask:0xa')
    for qp in ('[1,0,3,2]', '[2,3,0,1]'):
        for k in range(4): L.append(f'v_add_f32_dpp v{S+k}, v{S+k}, v{S+k} quad_perm:{qp} row_mask:0xf bank_mask:0xf')
    return L

def build(label, o):
    S = Sched(); slow = Prog()
    M = S.main
    ACC1, ACC2, WF = 16, 72, [128, 156]
    WV, LN16, XV, WR, XR, ONES, CSA = 184, 191, 192, 196, 200, 204, 208
    VDL, VZS, VN, VF, VST = 11, 12, 13, 14, 15
    nstamp = [0]; polls = []; clk = 's_memtime' if o['stamp'] == 2 else 's_memrealtime'
    def stamp(at):
        if not o['stamp']: return
        k = nstamp[0]; nstamp[0] += 1; s = 92
        S.add('stamp', f'{clk} s[{s}:{s+1}]', at, at + 1)
        S.add('stamp', f'v_writelane_b32 v{VST}, s{s}, {k}', at + 4, at + 5)
    def poll(name, loads, check):
        slow(f'{label}_{name}_slow:\ns_movk_i32 s101, 0x7fff\n{label}_{name}_loop:')
        for x in loads: slow(x)
        slow('s_waitcnt vmcnt(0)')
        if o['stamp']: slow(f'v_writelane_b32 v{VST}, s101, {16 + len(polls)}')
        polls.append(name)
        for x in check: slow(x)
        slow(f's_cbranch_vccz {label}_{name}_ok\ns_sub_u32 s101, s101, 1\ns_cmp_lg_u32 s101, 0\ns_cbranch_scc1 {label}_{name}_loop\ns_branch {label}_{name}_ok')
        return [f's_cbranch_vccnz {label}_{name}_slow', f'{label}_{name}_ok:']
    def tagcheck(base, n, t):
        L = [f'v_xor_b32 v{t}, s64, v{base}']
        for k in range(1, n): L.append(f'v_bitop3_b32 v{t}, v{t}, v{base+k}, s{64 + k%4} bitop3:0xf6')
        return L + [f'v_and_b32 v{t}, 0xff, v{t}'], f'v_cmp_ne_u32 vcc, 0, v{t}'
    def tagput(base): return [f'v_perm_b32 v{base+k}, v{base+k}, v{VN}, s{76+k}' for k in range(4)]

    S.mark('prologue')
    M(f's_cmp_ge_u32 s2, 256\ns_cbranch_scc1 {label}_end')
    for d, off, nm in SRDS: M(f's_load_dwordx2 s[{d}:{d+1}], s[0:1], {off}')
    M(f'{clk} s[92:93]')
    if o['stamp']: M(f'v_mov_b32 v{VST}, 0\nv_writelane_b32 v{VST}, s2, 31')
    if o.get('same'): M(f's_and_b32 s2, s2, {o["same"]}')
    M('v_lshrrev_b32 v1, 6, v0\nv_and_b32 v0, 63, v0\nv_readfirstlane_b32 s3, v1')
    M('v_and_b32 v1, 15, v0\nv_lshrrev_b32 v2, 4, v0')
    M('s_and_b32 s4, s2, 7\ns_lshr_b32 s5, s2, 3')
    if o['prefetch']:
        M(f's_getpc_b64 s[6:7]\n{label}_pc:\ns_lshl_b32 s70, s5, 11\ns_lshl_b32 s71, s3, 9\ns_add_u32 s70, s70, s71')
        M(f'v_lshlrev_b32 v3, 3, v0\nv_add_u32 v3, s70, v3\nv_min_u32 v3, {label}_end-{label}_pc-8, v3\nv_and_b32 v3, -4, v3')
        M('global_load_dwordx2 v[254:255], v3, s[6:7]')
    M('s_lshr_b32 s60, s4, 1\ns_lshl_b32 s60, s60, 2\ns_lshr_b32 s6, s5, 3\ns_add_u32 s60, s60, s6')
    M('s_and_b32 s61, s4, 1\ns_lshl_b32 s61, s61, 3\ns_and_b32 s6, s5, 7\ns_add_u32 s61, s61, s6')
    M('s_and_b32 s62, s61, 1')
    M('s_lshl_b32 s63, s60, 7\ns_lshl_b32 s6, s3, 5\ns_add_u32 s63, s63, s6')
    M(f's_mul_i32 s68, s3, {STGW}\ns_add_u32 s68, s68, {STG}\ns_mul_i32 s69, s3, 7168')
    M({3: 's_add_u32 s71, s60, s61', 2: 's_mov_b32 s71, s61', 1: 's_mov_b32 s71, s60', 0: 's_mov_b32 s71, 0', 4: 's_lshl_b32 s71, s60, 1'}[o['rot']])
    M('s_and_b32 s71, s71, 7\ns_mul_i32 s70, s71, 917504\ns_add_u32 s70, s70, 3584\ns_lshl_b32 s72, s71, 8')
    def xv_setup(RS, t0, t1):
        L = []
        for jj in range(4):
            L += [f'v_add_u32 v{t0}, s63, v2', f'v_add_u32 v{t0}, {8*jj}, v{t0}', f'v_mul_u32_u24 v{t0}, {RS}, v{t0}',
                  f'v_add_u32 v{t1}, {4*jj}, v2', f'v_xor_b32 v{t1}, v{t1}, v1', f'v_lshl_add_u32 v{t0}, v{t1}, 4, v{t0}',
                  f'v_subrev_u32 v{XV+jj}, {1024*jj}, v{t0}']
        return L
    M(xv_setup(2048, 3, 4))
    M('s_mul_i32 s4, s61, 224\ns_lshl_b32 s5, s3, 5\ns_lshl_b32 s6, s62, 1')
    for j in range(7):
        M(f'v_add_u32 v3, {64*j}, v0\nv_mul_u32_u24 v4, 4682, v3\nv_lshrrev_b32 v4, 16, v4')
        M(f'v_mul_u32_u24 v5, 14, v4\nv_sub_u32 v3, v3, v5\nv_add_u32 v3, s6, v3')
        M(f'v_subrev_u32 v5, 14, v3\nv_min_u32 v3, v3, v5\nv_lshlrev_b32 v3, 4, v3')
        M(f'v_and_b32 v5, 0x13, v4\nv_and_b32 v6, 4, v4\nv_lshl_or_b32 v5, v6, 1, v5\nv_bfe_u32 v6, v4, 3, 1\nv_lshl_or_b32 v5, v6, 2, v5')
        M(f'v_add_u32 v5, s5, v5\nv_mul_u32_u24 v5, 7168, v5\nv_add3_u32 v3, v3, v5, s4')
        M(f'v_subrev_u32 v{WV+j}, {1024*(j%4)}, v3')
    M(f'v_lshlrev_b32 v{LN16}, 4, v0')
    M('s_waitcnt lgkmcnt(0)')
    wsb = o.get('wsb', 0) << 20
    if wsb: M(f's_add_u32 s{WS}, s{WS}, {hx(wsb)}\ns_addc_u32 s{WS+1}, s{WS+1}, 0')
    for d, off, nm in SRDS: M(f's_and_b32 s{d+1}, s{d+1}, 0xffff\ns_mov_b32 s{d+2}, {hx(SIZE[nm] - (wsb if nm == "ws" else 0))}\ns_mov_b32 s{d+3}, 0x20000')
    M(f'v_min_u32 v{VF}, 1, v0\nv_lshlrev_b32 v{VF}, 30, v{VF}')
    if o['stamp']: M(f'v_writelane_b32 v{VST}, s92, 0'); nstamp[0] = 1
    M(f's_or_b32 s4, s2, s3\ns_cmp_lg_u32 s4, 0\ns_cbranch_scc1 {label}_nononce')
    M(f's_mul_i32 s4, s92, 0x9E3779B1\ns_or_b32 s4, s4, 1\nv_mov_b32 v3, s4')
    M(f'buffer_store_dword v3, v{VF}, {sr(DBG)}, 0 offen sc0 sc1')
    M(f'{label}_nononce:')

    def wdma(n):
        adv = ['s_add_u32 s71, s71, 1', 's_and_b32 s71, s71, 7', 's_mul_i32 s70, s71, 917504'] + (['s_add_u32 s70, s70, 3584'] if n < 7 else [])
        ld = lambda j: grp(f'buffer_load_dwordx4 v{WV+j}, {sr(WIN)}, s70 offen offset:{1024*(j%4)} lds', f'W{n}')
        return [[f's_add_u32 m0, s69, {SLAB*(n%3)}'] + [ld(j) for j in range(4)],
                [f's_add_u32 m0, s69, {SLAB*(n%3) + 4096}'] + [ld(j) for j in range(4, 7)] + (adv if n < 15 else [])]
    def udma(xv, srd, slot, tag, pre, adv, first=None):
        ld = lambda j: grp(f'buffer_load_dwordx4 v{xv + j%4}, {sr(srd)}, s{72 if j < 4 else 73} offen offset:{1024*(j%4)} lds', tag)
        return [[([first] if first else []) + grp(f's_add_u32 m0, s68, {SLOT[slot]}'), pre] + [ld(j) for j in range(4)],
                [f's_add_u32 m0, s68, {SLOT[slot] + 4096}'] + [ld(j) for j in range(4, 8)] + adv]
    def xdma(n): return udma(XV, Q, n % 2, f'X{n}', 's_add_u32 s73, s72, 8192',
                             ['s_add_u32 s72, s72, 256', 's_and_b32 s72, s72, 0x7ff'] if n < 7 else ['s_lshl_b32 s72, s60, 8'],
                             need_i(f'xr{n-2}') if n >= 2 else None)
    def sdma(u): return udma(XV, WSP, u % 2, f'S{u}', 's_add_u32 s73, s72, 16384',
                             ['s_add_u32 s72, s72, 256', 's_and_b32 s72, s72, 0xfff'] if u < 15 else ['s_lshl_b32 s72, s97, 18'],
                             need_i(f'xr{u+6}' if u < 2 else f'sr{u-2}'))
    def ureads(slot, ab, tag):
        return [(ks, grp(f'ds_read_b128 {ar(ab + 8*ks + 4*mt, 4)}, v{XR+ks} offset:{SLOT[slot] + 4096*mt}', tag)) for ks in range(4) for mt in range(2)]
    def flat(B):
        out = []
        for b in B:
            for g in b: out += grp(g)
        return out
    def emit_dma(B):
        for x in flat(B): M([x])
    XS = 96
    M('s_lshl_b32 s4, s60, 7\ns_lshl_b32 s5, s61, 3\ns_add_u32 s4, s4, s5\ns_lshl_b32 s5, s3, 1\ns_add_u32 s4, s4, s5\ns_lshl_b32 s5, s4, 11')
    for j in range(4): M(f'buffer_load_dwordx4 {vr(XS+4*j, 4)}, v{LN16}, {sr(Q)}, s5 offen offset:{1024*j}')
    first5 = [xdma(0), wdma(0), xdma(1), wdma(1), wdma(2)]
    for B in first5[:o['pro']]: emit_dma(B)
    M(f's_lshl_b32 s82, s4, 3\ns_lshl_b32 s83, s63, 3')
    M(f's_lshl_b32 s85, s60, 14\ns_lshl_b32 s5, s3, 8\ns_add_u32 s85, s85, s5\ns_add_u32 s85, s85, {W_Z2S}\ns_lshl_b32 s5, s61, 10\ns_add_u32 s84, s85, s5')
    M(f's_lshl_b32 s4, s61, 6\ns_lshl_b32 s5, s60, 2\ns_add_u32 s5, s5, s3\ns_add_u32 s5, s5, s4')
    M(f's_lshl_b32 s86, s5, 13\ns_add_u32 s86, s86, {W_Z2F}\ns_add_u32 s87, s86, 4096')
    M(f's_lshl_b32 s88, s5, 2\ns_add_u32 s88, s88, {W_ZFLAG}')
    M(f's_add_u32 s4, s4, s3\ns_lshl_b32 s89, s4, 2\ns_add_u32 s89, s89, {W_ZFLAG}\ns_lshl_b32 s90, s4, 13\ns_add_u32 s90, s90, {W_Z2F}')
    M('s_add_u32 s74, s60, 1\ns_and_b32 s74, s74, 15\ns_lshl_b32 s74, s74, 15')
    for k in range(4): M(f's_mov_b32 s{76+k}, {hx(0x07060500 + k)}')
    M(f's_mov_b32 s80, 1.0\ns_mov_b32 s81, 1.0')
    M('s_and_b32 s4, s2, 7\ns_lshr_b32 s5, s2, 3')
    M('s_lshr_b32 s95, s4, 1\ns_lshl_b32 s95, s95, 3\ns_lshr_b32 s6, s5, 2\ns_add_u32 s95, s95, s6')
    M('s_and_b32 s7, s4, 1\ns_lshl_b32 s7, s7, 2\ns_and_b32 s6, s5, 3\ns_add_u32 s7, s7, s6')
    M('s_lshl_b32 s96, s7, 8\ns_lshl_b32 s6, s3, 6\ns_add_u32 s96, s96, s6')
    M('s_add_u32 s97, s95, s7\ns_cmp_ge_u32 s97, 28\ns_cselect_b32 s6, 28, 0\ns_sub_u32 s97, s97, s6\ns_cmp_ge_u32 s97, 14\ns_cselect_b32 s6, 14, 0\ns_sub_u32 s97, s97, s6')
    PFV = dict(w=119, s=120, t=121, k=122, v=122, o=123, h=124); PFS = dict(w=WIN, s=WSP, t=WSP, k=KK, v=VV, o=WO, h=SK_)
    pfl = [(x[0], int(x[1:])) for x in o['pf'].split(',')] if o.get('pf') else []
    if pfl:
        M('s_and_b32 s4, s2, 7\ns_lshr_b32 s5, s2, 3\ns_lshl_b32 s5, s5, 2\ns_add_u32 s5, s5, s3')
        M('v_lshrrev_b32 v125, 5, v0\nv_lshlrev_b32 v125, 30, v125\nv_lshl_add_u32 v126, v0, 7, v125')
        M('s_lshr_b32 s6, s4, 1\ns_lshl_b32 s6, s6, 7\ns_add_u32 s6, s6, s5\ns_and_b32 s7, s4, 1')
        M('v_mul_u32_u24 v3, 4682, v0\nv_lshrrev_b32 v3, 16, v3\nv_mul_u32_u24 v3, 5376, v3\nv_add_u32 v3, v3, v126')
        M('s_mul_i32 s92, s6, 14336\ns_mul_i32 s93, s7, 1792\ns_add_u32 s92, s92, s93\nv_add_u32 v119, s92, v3')
        M('v_lshrrev_b32 v3, 3, v0\nv_mul_u32_u24 v3, 1024, v3\nv_add_u32 v3, v3, v126')
        M('s_lshl_b32 s92, s6, 13\ns_lshl_b32 s93, s7, 10\ns_add_u32 s92, s92, s93\nv_add_u32 v123, s92, v3')
        M('s_lshr_b32 s6, s4, 1\ns_lshl_b32 s6, s6, 21\ns_lshl_b32 s92, s7, 7\ns_add_u32 s92, s92, s5\ns_lshl_b32 s92, s92, 13\ns_add_u32 s92, s92, s6')
        M('v_add_u32 v120, s92, v126\nv_add_u32 v121, 4096, v120')
        M('s_lshr_b32 s92, s2, 4\ns_lshl_b32 s92, s92, 2\ns_add_u32 s92, s92, s3\ns_lshl_b32 s92, s92, 16\ns_and_b32 s93, s2, 15\ns_lshl_b32 s93, s93, 7\ns_add_u32 s92, s92, s93')
        M('v_lshl_add_u32 v3, v0, 11, v125\nv_add_u32 v122, s92, v3')
        M('s_lshl_b32 s92, s2, 2\ns_add_u32 s92, s92, s3\ns_lshl_b32 s92, s92, 12\nv_add_u32 v124, s92, v126')
    pfi = lambda c: f'buffer_load_dword v127, v{PFV[c]}, {sr(PFS[c])}, 0 offen' + o.get('pfmod', '')
    for c, n in pfl:
        if n < 0: M(pfi(c))
    M('v_xor_b32 v3, v1, v2\nv_lshlrev_b32 v3, 4, v3\nv_lshl_add_u32 v3, v1, 8, v3')
    M('v_lshrrev_b32 v5, 5, v0\nv_lshlrev_b32 v5, 4, v5\nv_bfe_u32 v4, v0, 4, 1\nv_lshl_add_u32 v5, v4, 2, v5\nv_bfe_u32 v4, v0, 2, 2\nv_add_u32 v5, v5, v4')
    M(f'v_mul_u32_u24 v5, 224, v5\nv_and_b32 v4, 3, v0\nv_lshl_add_u32 v5, v4, 3, v5\nv_sub_u32 v{VDL}, v{LN16}, v5')
    for ks in range(4):
        M(f's_add_u32 s4, s3, {ks}\ns_and_b32 s4, s4, 3\ns_lshl_b32 s5, s4, 6\ns_mul_i32 s4, s4, 7168')
        M(f'v_xor_b32 v4, s5, v3\nv_add_u32 v{XR+ks}, s68, v4\nv_add_u32 v{WR+ks}, s4, v5')
    for e in range(4): M(f'v_mov_b32 v{ONES+e}, 0x3f803f80')
    M(f'v_lshlrev_b32 v{VZS}, 10, v1\nv_lshl_add_u32 v{VZS}, v2, 6, v{VZS}')
    def wreads(n, ks):
        b = WF[ks % 2]
        return [grp(f'ds_read_b64_tr_b16 {vr(b+4*ft+2*h, 2)}, v{WR+ks} offset:{SLAB*(n%3) + 8*h*224 + 32*ft}', f'wr{n}') for ft in range(7) for h in range(2)]
    L = []
    for rr in range(2):
        s_, q_ = 112 + rr, 114 + rr
        for j in range(8):
            r = XS + 8*rr + j
            L += [f'v_lshlrev_b32 v116, 16, v{r}', f'v_and_b32 v117, 0xffff0000, v{r}']
            if j == 0: L += [f'v_add_f32 v{s_}, v116, v117', f'v_mul_f32 v{q_}, v116, v116', f'v_fmac_f32 v{q_}, v117, v117']
            else: L += [f'v_add_f32 v{s_}, v{s_}, v116', f'v_fmac_f32 v{q_}, v116, v116', f'v_add_f32 v{s_}, v{s_}, v117', f'v_fmac_f32 v{q_}, v117, v117']
    for mod in ('row_ror:8 row_mask:0xf', 'row_ror:4 row_mask:0xf', 'row_ror:2 row_mask:0xf', 'row_ror:1 row_mask:0xf', 'row_bcast:15 row_mask:0xa', 'row_bcast:31 row_mask:0xc'):
        L += [f'v_add_f32_dpp v{r}, v{r}, v{r} {mod} bank_mask:0xf' for r in range(112, 116)]
    c = hx(f2u(1/1024))
    L += [f'v_mul_f32 v{r}, {c}, v{r}' for r in range(112, 116)]
    L += [f'v_fma_f32 v{114+k}, -v{112+k}, v{112+k}, v{114+k}' for k in range(2)]
    L += [f'v_max_f32 v{114+k}, 0, v{114+k}' for k in range(2)]
    L += [f'v_add_f32 v{114+k}, {hx(f2u(1e-5))}, v{114+k}' for k in range(2)]
    L += [f'v_rsq_f32 v{114+k}, v{114+k}' for k in range(2)]
    L += ['v_sub_u32 v116, 63, v0', 'v_min_u32 v116, 1, v116', 'v_lshlrev_b32 v116, 30, v116', 'v_mov_b32 v117, 0']
    M([x.replace('v117', 'v118') for x in L[:-1]] + L[-1:])
    M([need_i('W0')]); M('s_barrier'); M([need_i('X0')])
    for ks, g in ureads(0, 0, 'xr0'): M(g)
    for g in wreads(0, 0): M(g)

    T1 = {}
    def gemm1(n0, n1):
        for n in range(n0, n1):
            ps = n // 8
            for ks in range(4):
                T1[n, ks] = S.n()
                for ft in range(7):
                    w = vr(WF[ks % 2] + 4*ft, 4)
                    for mt in range(2):
                        a = vr((ACC1, ACC2)[ps] + 8*ft + 4*mt, 4); x = ar(32*(n%8) + 8*ks + 4*mt, 4)
                        S.mfma(f'{MF} {a}, ' + (f'{x}, {w}' if ps == 0 else f'{w}, {x}') + f', {"0" if n%8 == 0 and ks == 0 else a}')
                    if ks == 0:
                        a = vr(CSA + 4*ft, 4); x = vr(ONES, 4)
                        S.mfma(f'{MF} {a}, ' + (f'{x}, {w}' if ps == 0 else f'{w}, {x}') + f', {"0" if n%8 == 0 else a}')
    use1 = lambda n, ks, ft: T1[n, ks] + (3 if ks == 0 else 2)*ft
    S.mark('pass1'); gemm1(0, 8)
    S.mark('gelu2'); G0 = S.n()
    SG, RA1, RA2, TP, SUM, CS1 = 72, 88, 96, 104, 112, 236
    for ft in range(7):
        a = [vr(ACC1 + 8*ft + 2*p, 2) for p in range(4)]; t = [vr(TP + 2*p, 2) for p in range(4)]
        cs = vr(CS1 + (ft & ~1), 2); sel = f'op_sel:[0,{ft&1},0] op_sel_hi:[1,{ft&1},1]'
        L = [f'v_pk_fma_f32 {a[p]}, {vr(SG+4*p, 2)}, {cs}, {a[p]} {sel} neg_lo:[1,0,0] neg_hi:[1,0,0]' for p in range(4)]
        L += [f'v_pk_mul_f32 {t[p]}, {a[p]}, {a[p]}' for p in range(4)]
        L += [f'v_pk_fma_f32 {t[p]}, {t[p]}, {vr(RA2+2*p, 2)}, {vr(RA1+2*p, 2)}' for p in range(4)]
        L += [f'v_pk_mul_f32 {t[p]}, {t[p]}, {a[p]}' for p in range(4)]
        L += [f'v_exp_f32 v{TP+e}, v{TP+e}' for e in range(8)]
        L += [f'v_pk_add_f32 {t[p]}, {t[p]}, s[80:81]' for p in range(4)]
        L += [f'v_rcp_f32 v{TP+e}, v{TP+e}' for e in range(8)]
        L += [f'v_pk_mul_f32 {a[p]}, {a[p]}, {t[p]}' for p in range(4)]
        if ft == 0:
            L += [f'v_pk_mul_f32 {vr(SUM+4*p, 2)}, {a[p]}, s[80:81]' for p in range(4)]
            L += [f'v_pk_mul_f32 {vr(SUM+4*p+2, 2)}, {a[p]}, {a[p]}' for p in range(4)]
        else:
            L += [f'v_pk_add_f32 {vr(SUM+4*p, 2)}, {vr(SUM+4*p, 2)}, {a[p]}' for p in range(4)]
            L += [f'v_pk_fma_f32 {vr(SUM+4*p+2, 2)}, {a[p]}, {a[p]}, {vr(SUM+4*p+2, 2)}' for p in range(4)]
        for k, x in enumerate(L): M(x, cap=1 if k % 4 == 3 else 0)
    G1 = S.n()
    M(reduce16(SUM)); M(tagput(SUM)); M('v_lshlrev_b32 v3, 2, v0')
    M('s_mov_b32 exec_lo, 0x11111111\ns_mov_b32 exec_hi, 0x11111111')
    M(f'buffer_store_dwordx4 {vr(SUM, 4)}, v3, {sr(WS)}, s84 offen sc1')
    M('s_mov_b64 exec, -1')
    S.mark('pass2'); gemm1(8, 16)
    S.mark('kv'); K0 = S.n()
    KR = [ACC1 + 8*j + 4 for j in range(7)]; VR_ = [236 + 4*j for j in range(4)]; SKR = [ACC1 + 8*j for j in range(4)]
    KU, VU = 156, 170; TAP = [50, 56, 58, 64]; OU = [178, 180, 182, 48]
    M(f's_lshl_b32 s4, s3, 11\ns_add_u32 s4, s4, {MISC}')
    M('v_lshrrev_b32 v4, 2, v0\nv_sub_u32 v4, 15, v4\nv_and_b32 v5, 3, v0\nv_lshrrev_b32 v6, 1, v4\nv_lshlrev_b32 v7, 1, v5\nv_xor_b32 v6, v6, v7')
    M('v_lshlrev_b32 v6, 4, v6\nv_and_b32 v4, 1, v4\nv_lshl_add_u32 v6, v4, 3, v6\nv_lshl_add_u32 v6, v5, 9, v6\nv_add_u32 v3, s4, v6')
    M('v_lshrrev_b32 v4, 5, v0\nv_and_b32 v5, 7, v0\nv_lshlrev_b32 v6, 1, v4\nv_xor_b32 v6, v6, v5\nv_lshrrev_b32 v7, 3, v0')
    M('v_lshlrev_b32 v6, 4, v6\nv_lshl_add_u32 v6, v7, 7, v6\nv_add_u32 v10, s4, v6')
    M(f'v_and_b32 v7, 3, v7\nv_lshl_add_u32 v7, v4, 3, v7\nv_lshlrev_b32 v7, 12, v7\nv_lshl_add_u32 v{VZS}, v5, 4, v7')
    M(f'v_xor_b32 v{VDL}, 64, v10')
    M('s_and_b32 s4, s2, 15\ns_lshl_b32 s4, s4, 1\ns_and_b32 s5, s3, 1\ns_add_u32 s4, s4, s5')
    M('s_lshr_b32 s5, s2, 4\ns_lshl_b32 s5, s5, 1\ns_lshr_b32 s6, s3, 1\ns_add_u32 s5, s5, s6')
    M(f's_lshl_b32 s6, s4, 5\ns_add_u32 s6, s6, s5\ns_lshl_b32 s6, s6, 2\ns_add_u32 s70, s6, {W_UFLAG}')
    M(f's_lshl_b32 s4, s4, 17\ns_lshl_b32 s5, s5, 7\ns_sub_u32 s4, s4, s5\ns_add_u32 s84, s4, {W_URT + 3968}\ns_add_u32 s85, s84, {16*4096}')
    for p in range(4):
        L = []
        for t_ in range(4):
            for c in range(2):
                src = SKR[p] + 2*c + t_//2
                L.append(f'v_lshlrev_b32 v{TAP[t_]+c}, 16, v{src}' if t_ % 2 == 0 else f'v_and_b32 v{TAP[t_]+c}, 0xffff0000, v{src}')
        for j in range(7): L += [f'v_lshlrev_b32 v{KU+2*j}, 16, v{KR[j]+p}', f'v_and_b32 v{KU+2*j+1}, 0xffff0000, v{KR[j]+p}']
        for j in range(4): L += [f'v_lshlrev_b32 v{VU+2*j}, 16, v{VR_[j]+p}', f'v_and_b32 v{VU+2*j+1}, 0xffff0000, v{VR_[j]+p}']
        for t_ in range(4):
            for r in range(4):
                k_ = vr(KU + 2*(r + t_), 2); tp = vr(TAP[3 - t_], 2); d = vr(OU[r], 2)
                L.append(f'v_pk_mul_f32 {d}, {k_}, {tp}' if t_ == 0 else f'v_pk_fma_f32 {d}, {k_}, {tp}, {d}')
        for r in range(4): L.append(f'v_pk_mul_f32 {vr(OU[r], 2)}, {vr(OU[r], 2)}, {vr(VU+2*r, 2)}')
        for c in range(2):
            L += [f'v_cvt_pk_bf16_f32 v{KU+2*c}, v{OU[3]+c}, v{OU[2]+c}', f'v_cvt_pk_bf16_f32 v{KU+2*c+1}, v{OU[1]+c}, v{OU[0]+c}']
        for c in range(2): L.append(f'ds_write_b64 v3, {vr(KU+2*c, 2)} offset:{128*(2*(p&1) + c)}')
        for k, x in enumerate(L): M(x, cap=1 if k % 4 == 3 else 0)
        ust = lambda b, b2: [f'buffer_store_dwordx4 {vr(b, 4)}, v{VZS}, {sr(WS)}, s84 offen sc1', f'buffer_store_dwordx4 {vr(b2, 4)}, v{VZS}, {sr(WS)}, s85 offen sc1']
        if p & 1:
            b, b2 = (SKR[0], SKR[1]) if p == 1 else (244, 248)
            M(f'ds_read_b128 {vr(b, 4)}, v10\nds_read_b128 {vr(b2, 4)}, v{VDL} offset:1024')
        if p == 2:
            M(ust(SKR[0], SKR[1]), tag='us'); M(f's_add_u32 s84, s84, {4*4096}\ns_add_u32 s85, s85, {4*4096}')
    S.mark('gemm2'); T2 = {}
    ZF = WF; ZR = WR
    for n in range(16):
        for ks in range(4):
            T2[n, ks] = S.n()
            for ft in range(7):
                for mt in range(2):
                    a = vr(ACC1 + 8*ft + 4*mt, 4)
                    S.mfma(f'{MF} {a}, {vr(ZF[ks%2] + 4*ft, 4)}, {ar(32*(n%8) + 8*ks + 4*mt, 4)}, {"0" if n == 0 and ks == 0 else a}')
    S.mark('pepi'); P0 = S.n()
    M1, RB, R1, ZV0, ZV1 = 184, 186, 188, 252, 253
    PO = ZF[0]
    for ft in range(7):
        L = []
        for mt in range(2):
            for h in range(2):
                a = vr(ACC1 + 8*ft + 4*mt + 2*h, 2)
                L.append(f'v_pk_fma_f32 {a}, {a}, {vr(R1, 2)}, {vr(RB, 2)} op_sel:[0,{mt},{mt}] op_sel_hi:[1,{mt},{mt}]')
        for k in range(4): L.append(f'v_pk_mul_f32 {vr(ACC1 + 8*ft + 2*k, 2)}, {vr(ACC1 + 8*ft + 2*k, 2)}, {vr(ACC2 + 8*ft + 2*k, 2)}')
        for mt in range(2):
            for h in range(2):
                a = ACC1 + 8*ft + 4*mt + 2*h
                L.append(f'v_cvt_pk_bf16_f32 v{PO + 8*(ft//2) + 4*mt + 2*(ft%2) + h}, v{a}, v{a+1}')
        M(L)
        if ft % 2 == 1:
            for mt in range(2): M(f'buffer_store_dwordx4 {vr(PO + 8*(ft//2) + 4*mt, 4)}, v{LN16}, {sr(WS)}, s82 offen offset:{1024*mt} sc1', tag='ps')
            M('s_add_u32 s82, s82, 4096')
        if ft == 6:
            for mt in range(2): M(f'buffer_store_dwordx2 {vr(PO + 24 + 4*mt, 2)}, v10, {sr(WS)}, s83 offen offset:{1024*mt} sc1', tag='ps')
    S.mark('conv')
    CA, FA, FB = 16, [48, 112], [80, 144]
    XV2, XR2, CVA, CVB, CVH, CVU, CVD = 244, 248, 4, 8, 250, 251, 9
    M([need_i('cvu')])
    for j in range(4):
        M(f'ds_read_b128 {vr(16+8*j, 4)}, v{CVU} offset:{1024*j}\nds_read_b32 v{20+8*j}, v{CVU} offset:{1024*j + 16}')
    for j in range(4):
        for d in range(4): M(f'v_alignbit_b32 v{16+8*j+d}, v{17+8*j+d}, v{16+8*j+d}, 16')
        M(f'ds_write_b128 v{CVU}, {vr(16+8*j, 4)} offset:{UD + 1024*j}')
    M([need_i('cvh')])
    def creads(rho):
        b = rho & 1; L = []
        for x in range(8):
            of = 16*rho + (128 if x % 2 == 0 else 0)
            L.append((x, f'ds_read_b128 {vr(FB[b]+4*x, 4)}, v{CVB} offset:{512*x + 64*rho}'))
            L.append((x, f'ds_read2_b32 {vr(FA[b]+4*x, 2)}, v{CVA + x//2} offset0:{of} offset1:{of+1}'))
            L.append((x, f'ds_read2_b32 {vr(FA[b]+4*x+2, 2)}, v{CVA + x//2} offset0:{of+2} offset1:{of+3}'))
        return L
    for x, g in creads(0): M(g)
    TC = {}
    for rho in range(8):
        b = rho & 1; first = set()
        for sidx in range(8):
            TC[rho, sidx] = S.n()
            for a in range(sidx + 1):
                for dl in range(sidx + 1):
                    if max(a, dl) == sidx and a + dl <= 7:
                        J = a + dl; c = vr(CA + 4*J, 4)
                        S.mfma(f'{MF} {c}, {vr(FA[b]+4*dl, 4)}, {vr(FB[b]+4*a, 4)}, {c if rho or J in first else "0"}')
                        first.add(J)
    S.mark('cvepi'); C1 = S.n()
    UB = 80
    M(f'v_lshlrev_b32 v{CVD}, 16, v{CVD}')
    for J in range(8):
        a = CA + 4*J
        M(f'v_and_b32 v100, 0xffff0000, v{UB+1+2*J}\nv_lshlrev_b32 v101, 16, v{UB+1+2*J}\nv_and_b32 v102, 0xffff0000, v{UB+2*J}\nv_lshlrev_b32 v103, 16, v{UB+2*J}')
        for h in range(2): M(f'v_pk_fma_f32 {vr(a+2*h, 2)}, {vr(100+2*h, 2)}, {vr(CVD-1, 2)}, {vr(a+2*h, 2)} op_sel:[0,1,0] op_sel_hi:[1,1,1]')
        M(f'v_cvt_pk_bf16_f32 v{a}, v{a}, v{a+1}\nv_cvt_pk_bf16_f32 v{a+1}, v{a+2}, v{a+3}', cap=1)
        M(f'ds_write_b64 v3, {vr(a, 2)} offset:{512*J}')
    for j in range(4): M(f'ds_read_b128 {vr(96+4*j, 4)}, v{CVH} offset:{1024*j}', tag='yb')
    YS = S.n()
    for j in range(4): M(f'buffer_store_dwordx4 {vr(96+4*j, 4)}, v{LN16}, {sr(WS)}, s86 offen offset:{1024*j} sc1', tag='ys')
    S.mark('gemm3'); T3 = {}
    A3, PFR = 16, [48, 64]
    for n in range(14):
        for ks in range(4):
            T3[n, ks] = S.n()
            for q in range(4):
                for dt in range(2):
                    a = vr(A3 + 8*q + 4*dt, 4)
                    S.mfma(f'{MF} {a}, {ar(32*(n%8) + 8*ks + 4*dt, 4)}, {vr(PFR[ks%2] + 4*q, 4)}, {"0" if n == 0 and ks == 0 else a}')
    S.mark('final'); F0 = S.n()
    E, XB, YB, ST, EV, XA, OA, YA = 128, 160, 112, 80, 88, 92, 94, 97
    for q in range(4):
        for dt in range(2):
            a = A3 + 8*q + 4*dt; e = E + 8*q + 4*dt
            for h in range(2): M(f'v_pk_add_f32 {vr(a+2*h, 2)}, {vr(a+2*h, 2)}, {vr(e+2*h, 2)}')
            M(f'v_cvt_pk_bf16_f32 v{a}, v{a}, v{a+1}\nv_cvt_pk_bf16_f32 v{a+1}, v{a+2}, v{a+3}')
            M(f'ds_write_b64 v{XA + q//2}, {vr(a, 2)} offset:{256*(q%2) + 32*dt}')
    for j in range(4): M(f'ds_read_b128 {vr(XB+4*j, 4)}, v{OA + max(0, j-1)} offset:{1024 if j == 1 else 0}')
    for j in range(4): M(f'buffer_store_dwordx4 {vr(XB+4*j, 4)}, v{EV+j}, {sr(OUT)}, s87 offen')
    if o['stamp']:
        M(f'{clk} s[92:93]\nv_writelane_b32 v{VST}, s92, 15\nv_readlane_b32 s2, v{VST}, 31')
        M(f's_lshl_b32 s4, s2, 2\ns_add_u32 s4, s4, s3\ns_lshl_b32 s4, s4, 7\ns_add_u32 s4, s4, {W_STAMP}\nv_lshlrev_b32 v3, 2, v0\ns_mov_b32 exec_hi, 0')
        M(f'buffer_store_dword v{VST}, v3, {sr(WS)}, s4 offen')
        if o.get('amp'):
            a_, b_, k_ = map(int, o['amp'].split(','))
            M(f'v_readlane_b32 s4, v{VST}, {a_}\nv_readlane_b32 s5, v{VST}, {b_}\ns_sub_u32 s5, s5, s4\ns_mul_i32 s5, s5, {k_}\n' + ('s_lshr_b32 s5, s5, 4\ns_memrealtime s[92:93]\ns_waitcnt lgkmcnt(0)\n' if o['stamp'] == 2 else '') + f's_min_u32 s5, s5, 30000\ns_mov_b32 s6, s92')
            if o.get('ampwg') is not None: M(f's_cmp_lg_u32 s2, {o["ampwg"]}\ns_cbranch_scc1 {label}_end')
            M(f's_mov_b32 s7, 0x40000\n{label}_amp:\ns_memrealtime s[92:93]\ns_waitcnt lgkmcnt(0)\ns_sub_u32 s4, s92, s6\ns_cmp_ge_u32 s4, s5\ns_cbranch_scc1 {label}_end')
            M(f's_sub_u32 s7, s7, 1\ns_cmp_lg_u32 s7, 0\ns_cbranch_scc1 {label}_amp')

    bar = lambda *tags: [need_i(*tags), I('s_barrier')]
    LAT = o['lat']
    def zreads(n, ks):
        return [grp(f'ds_read_b128 {vr(ZF[ks%2] + 4*ft, 4)}, v{ZR+ks} offset:{SLAB*((n+1)%3) + 1024*ft}', f'zr{n}') for ft in range(7)]
    P1 = T1[0, 0]; P2 = T1[8, 0]; G2 = T2[0, 0]; CV = TC[0, 0]; G3 = T3[0, 0]
    tb1 = lambda n: T1[n, 3] + o['bo1']
    def last1(n, ks, ft):
        n, ks = (n, ks - 2) if ks >= 2 else (n - 1, ks + 2)
        return use1(n, ks, ft) + (2 if ks == 0 else 1) + 1 if n >= 0 else P1
    for n in range(16):
        for ks in range(4):
            n2, k2 = (n, ks + 1) if ks < 3 else (n + 1, 0)
            if n == 7 and ks == 2: S.add('rd', bar('csw'), T1[7, 2] + 3, T1[7, 2] + 4)
            if n2 < 16:
                if k2 == 0: S.add('rd', bar(f'W{n2}', f'wr{n}'), tb1(n), tb1(n) + 1)
                for q, g in enumerate(wreads(n2, k2)):
                    u_ = use1(n2, k2, q//2) if n2 != 8 or k2 else G0
                    S.add('rd', g, last1(n2, k2, q//2), u_, soft=min(u_, tb1(n2)) - LAT)
            else:
                S.each('rd', [f'v_add_u32 v{WR+k}, v{WR+k}, v{VDL}' for k in range(4)], T1[15, 2] - 1, tb1(15))
                S.add('rd', bar('wr15', 'zw', 'csw2'), tb1(15), tb1(15) + 1)
                for q, g in enumerate(zreads(0, 0)): S.add('rd', g, tb1(15), K0)
        B = (wdma(n + 3) if n + 3 < 16 else []) + (xdma(n + 3) if n + 3 < 8 else [])
        B = [[pfi(c)] for c, n_ in pfl if n_ == n] + B
        if B: S.vm(B, tb1(n) + 1, tb1(n + 1) + 1 if n != 7 else G0 + 100)
        if n + 1 < 8:
            for q, (ks, g) in enumerate(ureads((n + 1) % 2, 32*(n + 1), f'xr{n+1}')):
                S.add('xr', ([need_i(f'X{n+1}')] if q == 0 else []) + g, tb1(n) - LAT - 1, tb1(n) + 4, soft=tb1(n) - LAT + q)
    S.vm([b for B in first5[o['pro']:4] for b in B] + xdma(2) + (wdma(2) if o['pro'] < 5 else []), P1, tb1(0) - 10 if o['pro'] < 4 else tb1(0) + 1)
    ld = [f'buffer_load_dword v{VN}, v117, {sr(DBG)}, 0 offen sc0 sc1']
    S.add('st', ld, P1 + o['nonce_ld'])
    ck = [f'v_cmp_eq_u32 vcc, 0, v{VN}']
    S.add('st', ck + poll('nonce', ld, ck), P1 + o['nonce_ck'])
    S.each('st', [f'v_readfirstlane_b32 s64, v{VN}'] + tagput(112), P1)
    S.add('st', f'buffer_store_dwordx4 v[112:115], v116, {sr(WS)}, s82 offen sc1', P1)
    S.each('st', ['s_lshr_b32 s65, s64, 8', 's_lshr_b32 s66, s64, 16', 's_lshr_b32 s67, s64, 24', 'v_lshlrev_b32 v116, 6, v2'], P1)
    ld = [f'buffer_load_dwordx4 {vr(SG+4*j, 4)}, v116, {sr(WS)}, s83 offen offset:{16*j} sc1' for j in range(4)]
    S.each('st', ld, P1 + o['stat_ld'])
    S.each('st', xv_setup(4096, 117, 118), tb1(5) + 1, soft=(tb1(5), tb1(6)))
    pre, cmp_ = tagcheck(SG, 16, 117)
    S.each('st', pre, P1 + o['stat_ck'], soft=(P1 + o['stat_ck'], P1 + o['stat_ck'] + 20))
    S.add('st', [cmp_] + poll('stat', ld, pre + [cmp_]), P1)
    S.each('st', ['v_lshrrev_b32 v117, 2, v1', 'v_lshl_add_u32 v116, v117, 4, v116'], P1)
    S.add('st', f'buffer_load_dwordx4 v[252:255], v116, {sr(WS)}, s83 offen sc1', P1)
    L = []
    for r in range(8):
        rr = SG + 4*(r//2) + 2 + r % 2
        L += [f'v_mul_f32 v{RA2+r}, v{rr}, v{rr}', f'v_mul_f32 v{RA1+r}, {hx(f2u(GELU_C1))}, v{rr}', f'v_mul_f32 v{RA2+r}, v{RA2+r}, v{rr}',
              f'v_mul_f32 v{RA2+r}, {hx(f2u(GELU_C2))}, v{RA2+r}']
    S.each('st', L, P1, G0, soft=(P1 + o['stat_ck'] + 20, G0))
    def cs_reduce(t):
        L = [f'ds_read_b128 {vr(t+4*w, 4)}, v5 offset:{STGW*w}' for w in range(4)]
        L += [f'v_add_f32 v{t+e}, v{t+e}, v{t+4+e}' for e in range(4)] + [f'v_add_f32 v{t+8+e}, v{t+8+e}, v{t+12+e}' for e in range(4)]
        L += [f'v_add_f32 v{t+e}, v{t+e}, v{t+8+e}' for e in range(4)]
        return L + [f'ds_write_b128 v6, {vr(t, 4)} offset:{PAD + 512}']
    S.each('cs', ['v_lshlrev_b32 v3, 2, v1', 'v_add_u32 v3, s68, v3', 'v_lshlrev_b32 v4, 4, v2', 'v_add_u32 v4, s68, v4',
                  f'v_and_b32 v6, 0x1f0, v{LN16}', f'v_add_u32 v5, {STG + PAD}, v6', 'v_add_u32 v6, s68, v6'], P1, T1[7, 1])
    S.each('cs', [f'ds_write_b32 v3, v{CSA+4*ft} offset:{PAD + 64*ft}' for ft in range(7)], T1[7, 1], T1[7, 2] - 1, tag='csw')
    S.each('cs', cs_reduce(CSA), T1[7, 2] + 4, G0)
    S.each('cs', [f'ds_read_b32 v{CS1+ft}, v3 offset:{PAD + 512 + 64*ft}' for ft in range(7)], T1[7, 2], G0)
    S.add('cs', ['s_mov_b32 exec_lo, 0x10001', 's_mov_b32 exec_hi, 0x10001'] + [f'ds_write_b128 v4, {vr(CSA+4*ft, 4)} offset:{PAD + 64*ft}' for ft in range(7)] +
          ['s_mov_b64 exec, -1'], T1[15, 1], T1[15, 3] - 1, tag='csw2')
    S.each('cs', cs_reduce(CSA), tb1(15) + 1, K0)
    S.each('cs', [f'ds_read_b128 {vr(CSA+4*ft, 4)}, v4 offset:{PAD + 512 + 64*ft}' for ft in range(7)], T1[15, 3], K0)
    S.vm(sdma(0), G0 + 100, G0 + 200); S.vm(sdma(1), G0 + 200, G0 + 300)
    def free_at(u):
        if u < 7: return T1[9 + u, 0]
        if u == 7: return K0
        return T2[u - 7, 0]
    for u in range(16):
        t0 = free_at(u)
        if u >= 8: t0 = max(t0, T2[o.get('sread', lambda u: u - 7)(u), 0])
        for q, (ks, g) in enumerate(ureads(u % 2, 32*(u % 8), f'sr{u}')):
            S.add('xr', ([need_i(f'S{u}')] if q == 0 else []) + g, t0, min(t0 + 24, T2[u, ks]), soft=t0 + 2*q + 2)
        if u + 2 < 16: S.vm(sdma(u + 2), t0 + 24, t0 + 76)
    PZ = 236
    ld = [f'buffer_load_dwordx4 {vr(PZ+4*j, 4)}, v{VZS}, {sr(WS)}, s85 offen offset:{16*j} sc1' for j in range(4)]
    S.each('z', ld, P2 + o['z2s_ld'])
    pre, cmp_ = tagcheck(PZ, 16, 7)
    zt = P2 + o['z2s_ck']; zr = o.get('zrate', 10)
    S.each('z', pre, zt, soft=(zt, zt + 17*zr//10)); zt += 17*zr//10
    S.add('z', [cmp_] + poll('z2s', ld, pre + [cmp_]), P2)
    c = hx(f2u(1/1792))
    L = reduce16(PZ) + [f'v_mul_f32 v{PZ+k}, {c}, v{PZ+k}' for k in range(4)]
    L += [f'v_mul_f32 v{7+k}, v{254+k}, v{254+k}' for k in range(2)]
    L += [f'v_fma_f32 v{PZ+2+k}, -v{PZ+k}, v{PZ+k}, v{PZ+2+k}' for k in range(2)]
    L += [f'v_max_f32 v{PZ+2+k}, 0, v{PZ+2+k}' for k in range(2)]
    L += [f'v_mul_f32 v{7+k}, v{7+k}, v{PZ+2+k}' for k in range(2)]
    L += [f'v_add_f32 v{7+k}, {hx(f2u(1e-5))}, v{7+k}' for k in range(2)]
    L += [f'v_rsq_f32 v{7+k}, v{7+k}' for k in range(2)]
    L += [f'v_mul_f32 v{7+k}, v{7+k}, v{254+k}' for k in range(2)]
    L += [f'v_mul_f32 v{9+k}, v{7+k}, v{PZ+k}' for k in range(2)]
    L += [f'v_mov_b32_dpp v{PZ+8+r}, v{7 + r%2} row_newbcast:{4*(r//2)} row_mask:0xf bank_mask:0xf' for r in range(8)]
    L += [f'v_mov_b32_dpp v{PZ+r}, v{9 + r%2} row_newbcast:{4*(r//2)} row_mask:0xf bank_mask:0xf' for r in range(8)]
    S.each('z', L, P2, soft=(zt, zt + len(L)*zr//10)); zt += len(L)*zr//10
    for ft in range(7):
        a = ACC1 + 8*ft
        S.each('z', [f'v_fma_f32 v{a+r}, v{a+r}, v{PZ+8+r}, -v{PZ+r}' for r in range(8)] +
               [f'v_cvt_pk_bf16_f32 v{a+k}, v{a+2*k}, v{a+2*k+1}' for k in range(4)], P2, soft=(zt, zt + 13*zr//10)); zt += 13*zr//10
        S.add('z', f'buffer_store_dwordx4 {vr(a, 4)}, v{LN16}, {sr(WS)}, s{86 + ft//4} offen offset:{1024*(ft%4)} sc1', P2, tag='zs')
    tz = zt
    S.each('z', ['s_lshr_b32 s4, s2, 4', 's_lshl_b32 s4, s4, 1', 's_lshr_b32 s5, s3, 1', 's_add_u32 s4, s4, s5', 's_lshl_b32 s4, s4, 17',
                 's_and_b32 s5, s2, 15', 's_lshl_b32 s5, s5, 1', 's_and_b32 s6, s3, 1', 's_add_u32 s5, s5, s6', 's_lshl_b32 s6, s5, 6', 's_add_u32 s4, s4, s6',
                 's_lshl_b32 s5, s5, 8',
                 'v_lshrrev_b32 v7, 2, v0', 'v_lshlrev_b32 v7, 13, v7', 'v_and_b32 v10, 3, v0', 'v_lshl_add_u32 v7, v10, 4, v7', 'v_add_u32 v7, s4, v7',
                 'v_subrev_u32 v8, 6144, v7', 'v_subrev_u32 v9, 2048, v7', 'v_lshlrev_b32 v10, 6, v10'], P2, soft=(tz, tz + 30))
    kld = lambda j, v, of: f'buffer_load_dwordx4 {vr(KR[j], 4)}, v{v}, {sr(KK)}, 0 offen offset:{of}'
    S.add('z', [need_i('zs'), I(f'buffer_store_dword v{VN}, v{VF}, {sr(WS)}, s88 offen sc1')], tz + o['zflag_lag'])
    S.each('z', [kld(0, 8, 0), kld(1, 8, 2048), kld(2, 9, 0), 'v_add_u32 v8, 4096, v7', kld(3, 7, 0), kld(4, 7, 2048), kld(5, 8, 0), kld(6, 8, 2048)] +
           [f'buffer_load_dwordx4 {vr(VR_[j], 4)}, v{7 + j//2}, {sr(VV)}, 0 offen offset:{2048*(j%2)}' for j in range(4)], P2)
    S.each('z', [f'v_add_u32 v9, s69, v{LN16}'] + [f'ds_write_b128 v9, {vr(ACC1 + 8*ft, 4)} offset:{SLAB + 1024*ft}' for ft in range(7)], tb1(13) + 1, T1[15, 3] - 1, tag='zw')
    S.each('z', [f'buffer_load_dwordx4 {vr(SKR[j], 4)}, v10, {sr(SH)}, s5 offen offset:{16*j}' for j in range(4)], P2, K0)
    S.each('z', ['v_lshrrev_b32 v7, 2, v1', 'v_lshlrev_b32 v8, 6, v7', 'v_bfe_u32 v9, v1, 1, 1', 'v_lshl_add_u32 v8, v9, 4, v8', 'v_and_b32 v9, 1, v1', f'v_lshl_add_u32 v190, v9, 2, v8',
                 'v_and_b32 v9, 3, v1', 'v_lshl_add_u32 v7, v7, 3, v9', 'v_add_u32 v7, s63, v7', 'v_lshlrev_b32 v7, 1, v7'] +
           [f'buffer_load_dword v{M1+mt}, v190, {sr(WS)}, s83 offen offset:{32*mt} sc1' for mt in range(2)] +
           [f'buffer_load_dword v{R1+mt}, v190, {sr(WS)}, s83 offen offset:{32*mt + 8} sc1' for mt in range(2)] +
           [f'buffer_load_ushort v{RB+mt}, v7, {sr(BSP)}, 0 offen offset:{8*mt}' for mt in range(2)], T1[13, 3], K0)
    def zdma(n, first=None):
        ld = lambda j: grp(f'buffer_load_dwordx4 v{ZVv[j//4]}, {sr(WS)}, s74 offen offset:{1024*(j%4)} sc1 lds', f'Z{n}')
        sl = SLAB*((n + 1) % 3)
        return [(first or []) + [f's_add_u32 m0, s69, {sl}'] + [ld(j) for j in range(4)],
                [f's_add_u32 m0, s69, {sl + 4096}'] + [ld(j) for j in range(4, 7)] + ['s_add_u32 s74, s74, 0x8000', 's_and_b32 s74, s74, 0x7ffff']]
    ZVv = [ZV0, ZV1]
    S.each('z', [f'v_add_u32 v{ZV0}, s90, v{LN16}', f'v_add_u32 v{ZV1}, 4096, v{ZV0}', 'v_lshlrev_b32 v254, 4, v1'], P2, K0)
    ld = [f'buffer_load_dword v255, v254, {sr(WS)}, s89 offen sc1']; ck = ['v_cmp_ne_u32 vcc, s64, v255']
    S.add('z', ld, P2 + o['zpoll'], K0 + 8)
    t0 = K0 + o['zcheck']
    S.vm(zdma(1, [ck + poll('zf', ld, ck)]), t0, t0 + 36); S.vm(zdma(2), t0 + 36, t0 + 72)
    tb2 = lambda n: T2[n, 3] + o['bo2']
    for n in range(16):
        for ks in range(4):
            n2, k2 = (n, ks + 1) if ks < 3 else (n + 1, 0)
            if k2 == 0: S.add('rd', bar(f'Z{n2}', f'zr{n}') if n2 < 16 else bar(f'zr{n}'), tb2(n), tb2(n) + 1)
            if n2 < 16:
                n0, k0 = (n2, k2 - 2) if k2 >= 2 else (n2 - 1, k2 + 2)
                for q, g in enumerate(zreads(n2, k2)):
                    S.add('rd', g, T2[n0, k0] + 2*q + 2 if n0 >= 0 else G2, T2[n2, k2] + 2*q, soft=min(T2[n2, k2] + 2*q, tb2(n2)) - LAT)
        if n + 3 < 16: S.vm(zdma(n + 3), tb2(n) + 1, tb2(n + 1) + 1, tb2(n + 1) + 20)
    A1, A2, TM = 204, 206, 236
    L = [f'v_lshlrev_b32 v{RB+mt}, 16, v{RB+mt}' for mt in range(2)]
    L += [f'v_mul_f32 v{A2+mt}, v{R1+mt}, v{R1+mt}' for mt in range(2)] + [f'v_mul_f32 v{A1+mt}, {hx(f2u(GELU_C1))}, v{R1+mt}' for mt in range(2)]
    L += [f'v_mul_f32 v{A2+mt}, v{A2+mt}, v{R1+mt}' for mt in range(2)] + [f'v_mul_f32 v{RB+mt}, v{RB+mt}, v{R1+mt}' for mt in range(2)]
    L += [f'v_mul_f32 v{A2+mt}, {hx(f2u(GELU_C2))}, v{A2+mt}' for mt in range(2)]
    for ft in range(7):
        for mt in range(2):
            a = [ACC2 + 8*ft + 4*mt + e for e in range(4)]; t = [TM + e for e in range(4)]
            L += [f'v_fma_f32 v{a[e]}, -v{M1+mt}, v{CSA+4*ft+e}, v{a[e]}' for e in range(4)]
            L += [f'v_mul_f32 v{t[e]}, v{a[e]}, v{a[e]}' for e in range(4)]
            L += [f'v_fma_f32 v{t[e]}, v{t[e]}, v{A2+mt}, v{A1+mt}' for e in range(4)]
            L += [f'v_mul_f32 v{t[e]}, v{t[e]}, v{a[e]}' for e in range(4)]
            L += [f'v_exp_f32 v{t[e]}, v{t[e]}' for e in range(4)]
            L += [f'v_add_f32 v{t[e]}, 1.0, v{t[e]}' for e in range(4)]
            L += [f'v_rcp_f32 v{t[e]}, v{t[e]}' for e in range(4)]
            L += [f'v_mul_f32 v{a[e]}, v{a[e]}, v{t[e]}' for e in range(4)]
    S.each('g1', L + [f'v_mov_b32 v{208+e}, 0' for e in range(4)], G2 + 4, T2[14, 0], soft=(G2 + 4, T2[14, 0]))
    S.add('g1', [need_i('or5')] + grp(['s_mov_b64 exec, 0x3fffffff', f'ds_write_b128 v{CVH}, v[208:211]', 's_mov_b64 exec, 0xf',
                 f'ds_write_b128 v{CVU}, v[208:211] offset:4096', f'ds_write_b128 v{CVU}, v[208:211] offset:{UD + 4096}', 's_mov_b64 exec, -1']), T2[14, 0] + 44, P0)
    S.each('su', ust(244, 248), G2, tag='us')
    L = ['s_lshl_b32 s4, s2, 2', 's_add_u32 s4, s4, s3',
         's_lshl_b32 s71, s4, 12', f's_add_u32 s75, s71, {W_URT}', f's_add_u32 s86, s71, {W_YT}',
         's_lshl_b32 s98, s4, 2', f's_add_u32 s98, s98, {W_YFLAG}',
         's_lshr_b32 s94, s4, 5', 's_lshl_b32 s94, s94, 7', f's_add_u32 s94, s94, {W_UFLAG}',
         's_lshl_b32 s4, s4, 1', f'v_mov_b32 v{CVD}, 0', f'buffer_load_ushort v{CVD}, v{CVD}, {sr(DD)}, s4 offen',
         's_lshl_b32 s4, s60, 1', 's_lshr_b32 s5, s3, 1', 's_add_u32 s4, s4, s5',
         's_lshl_b32 s88, s4, 7', 's_lshl_b32 s5, s61, 3', 's_add_u32 s88, s88, s5', 's_and_b32 s6, s3, 1', 's_lshl_b32 s5, s6, 2', 's_add_u32 s88, s88, s5',
         f's_add_u32 s88, s88, {W_PFLAG}',
         's_mul_i32 s4, s4, 56', 's_lshr_b32 s5, s61, 1', 's_mul_i32 s5, s5, 7', 's_add_u32 s4, s4, s5', 's_lshl_b32 s4, s4, 12',
         's_lshl_b32 s6, s6, 11', 's_add_u32 s4, s4, s6', f's_add_u32 s4, s4, {W_PF}', 's_add_u32 s83, s4, 12288', 's_lshl_b32 s5, s62, 14', 's_add_u32 s82, s4, s5',
         's_lshl_b32 s5, s62, 3', f'v_add_u32 v10, s5, v{LN16}',
         's_lshl_b32 s87, s95, 17', 's_lshl_b32 s91, s95, 7', f's_add_u32 s91, s91, {W_PFLAG}',
         's_lshl_b32 s99, s96, 1', f's_add_u32 s99, s99, {W_YFLAG}',
         's_lshl_b32 s100, s96, 11', 's_lshl_b32 s5, s95, 7', 's_add_u32 s100, s100, s5', f's_add_u32 s100, s100, {W_YT}',
         's_lshl_b32 s60, s95, 9', 's_lshl_b32 s63, s3, 12', 's_lshl_b32 s90, s97, 14',
         f's_mul_i32 s4, s95, {56*4096}', 's_add_u32 s4, s4, s63', f's_add_u32 s4, s4, {W_PF}']
    S.each('su', L, G2, soft=(G2, G2 + 150))
    S.add('su', [need_i('us'), I(f'buffer_store_dword v{VN}, v{VF}, {sr(WS)}, s70 offen sc1')], G2 + 150)
    PVD = VZS
    L = [f'v_add_u32 v{PVD}, s4, v{LN16}',
         f's_mul_i32 s85, s3, {HW}', f's_add_u32 s85, s85, {HREG}', 's_lshl_b32 s84, s3, 11', f's_add_u32 s84, s84, {MISC}', f's_add_u32 s61, s68, {PAD}',
         f'v_add_u32 v{CVH}, s85, v{LN16}', f'v_add_u32 v{CVU}, s61, v{LN16}',
         'v_lshrrev_b32 v4, 2, v0', 'v_lshlrev_b32 v4, 11, v4', 'v_and_b32 v5, 3, v0', 'v_bfe_u32 v6, v0, 4, 1', 'v_lshlrev_b32 v6, 1, v6', 'v_xor_b32 v6, v5, v6',
         'v_lshlrev_b32 v6, 4, v6', f'v_add3_u32 v{XV2}, v4, v6, s96'] + [f'v_add_u32 v{XV2+j}, {31744*j}, v{XV2}' for j in range(1, 4)] + [
         'v_lshlrev_b32 v4, 2, v2', 'v_bfe_u32 v6, v0, 2, 2', 'v_add_u32 v4, v4, v6', 'v_lshlrev_b32 v4, 6, v4', 'v_lshl_add_u32 v4, v5, 3, v4',
         'v_and_b32 v6, 1, v2', 'v_lshl_add_u32 v4, v6, 5, v4', f'v_add_u32 v{XR2}, s68, v4', 'v_xor_b32 v4, 32, v4', f'v_add_u32 v{XR2+1}, s68, v4',
         'v_lshlrev_b32 v3, 5, v1', f'v_lshl_add_u32 v{CVB}, v2, 4, v3', f'v_add_u32 v{CVB}, s85, v{CVB}',
         'v_lshl_add_u32 v3, v2, 3, v3', f's_add_u32 s4, s61, {4088 - 3584}', f'v_sub_u32 v{VDL}, s4, v3', 'v_add_u32 v3, s85, v3',
         'v_sub_u32 v4, 1807, v1', 'v_lshrrev_b32 v4, 1, v4', 'v_lshlrev_b32 v4, 2, v4', 'v_lshl_add_u32 v4, v2, 4, v4',
         'v_and_b32 v5, 1, v1', f'v_mul_u32_u24 v5, {UD}, v5', 'v_sub_u32 v4, v4, v5', f's_add_u32 s4, s61, {UD - 512}', 'v_add_u32 v4, s4, v4',
         'v_subrev_u32 v5, 1024, v4', 'v_subrev_u32 v6, 2048, v4', 'v_subrev_u32 v7, 3072, v4',
         'v_and_b32 v254, 31, v0', 'v_lshlrev_b32 v254, 2, v254']
    S.each('su', L, G2 + 160, T2[7, 0], soft=(G2 + 160, T2[7, 0]))
    oslot = lambda j: j % 2 if j < 6 or j > 8 else 0
    oprev = {0: 'sr14', 1: 'sr15', 6: 'or4', 7: 'or6', 8: 'or7', 9: 'cu'}
    def odma(j): return udma(XV2, WO, oslot(j), f'O{j}', 's_add_u32 s73, s72, 0x20000',
                             ['s_add_u32 s72, s72, 0x40000', f's_cmp_eq_u32 s72, {hx(14 << 18)}\ns_cselect_b32 s72, 0, s72'], need_i(oprev.get(j, f'or{j-2}')))
    def oreads(j):
        return [(ks, grp(f'ds_read_b64_tr_b16 {ar(32*(j%8) + 8*ks + 4*dt + 2*h, 2)}, v{XR2+dt} offset:{SLOT[oslot(j)] + (32*ks + 16*h)*64}', f'or{j}'))
                for ks in range(4) for dt in range(2) for h in range(2)]
    ord_t = {j: T2[9 + j, 0] for j in range(7)}; ord_t[7] = CV + 110
    for j in range(8, 14): ord_t[j] = T3[2*j - 15, 0]
    RW = 48
    odm_t = {0: T2[7, 0] + 40, 1: T2[8, 0] + 40, 6: ord_t[4] + RW, 7: CV, 8: ord_t[7] + RW, 9: G3}
    for j in range(14):
        rw = RW if j < 8 else 24
        t0 = odm_t.get(j) if j in odm_t else ord_t[j - 2] + (RW if j < 10 else 24)
        t1 = t0 + (40 if j < 7 or j == 8 else 24)
        S.vm(odma(j), t0, t1, min(t1 + 20, ord_t[j]))
        for q, (ks, g) in enumerate(oreads(j)):
            S.add('xr', ([need_i(f'O{j}')] if q == 0 else []) + g, ord_t[j], min(ord_t[j] + rw, T3[j, ks]), soft=ord_t[j] + q*rw//16 + 2)
    ld = [f'buffer_load_dword v255, v254, {sr(WS)}, s94 offen sc1']
    S.add('su', ld, G2 + o['upoll'])
    S.add('su', ck + poll('uf', ld, ck), G2 + o['ucheck'], T2[14, 0])
    S.vm([['s_add_u32 m0, s85, 480'] + [grp(f'buffer_load_dwordx4 v{LN16}, {sr(SK_)}, s71 offen offset:{1024*j} lds', 'cvh') for j in range(4)]], tb2(13) + 1, tb2(13) + 20)
    S.vm([[[need_i('or5'), I('s_mov_b32 m0, s61')]] + [grp(f'buffer_load_dwordx4 v{LN16}, {sr(WS)}, s75 offen offset:{1024*j} sc1 lds', 'cvu') for j in range(4)]],
         ord_t[5] + RW, ord_t[5] + RW + 12)
    for rho in range(7):
        for x, g in creads(rho + 1): S.add('rd', g, TC[rho, 0] - 1, TC[rho + 1, x], tag='cu', soft=TC[rho + 1, x] - LAT)
    S.each('rd', [f'ds_read_b64 {vr(UB+2*J, 2)}, v{VDL} offset:{3584 - 512*J}' for J in range(8)], TC[7, 0], C1, tag='cu')
    S.add('su', [need_i('ps'), I(f'buffer_store_dword v{VN}, v{VF}, {sr(WS)}, s88 offen sc1')], CV + o['pflag'])
    ld = [f'buffer_load_dword v255, v254, {sr(WS)}, s91 offen sc1']
    S.add('su', ld, CV + o['ppoll'], CV + o['ppoll'] + 4)
    def pdma(n, first=None):
        return [(first or []) + [f's_add_u32 m0, s63, {16384*(n%4)}'] +
                [grp(f'buffer_load_dwordx4 v{PVD}, {sr(WS)}, s90 offen offset:{1024*j} sc1 lds', f'P{n}') for j in range(4)] +
                ['s_add_u32 s90, s90, 0x4000', f's_cmp_eq_u32 s90, {hx(14 << 14)}\ns_cselect_b32 s90, 0, s90']]
    t0 = CV + o['pcheck']
    S.vm(pdma(0, [ck + poll('pf', ld, ck)]), t0, t0 + 10)
    for n in range(1, 4): S.vm(pdma(n), t0 + 10*n, t0 + 10*n + 10)
    def preads(n, ks):
        return [grp(f'ds_read_b128 {vr(PFR[ks%2] + 4*q, 4)}, v{LN16} offset:{16384*(n%4) + 4096*ks + 1024*q}', f'pr{n}') for q in range(4)]
    S.add('rd', [need_i('P0'), I('s_barrier')], YS - 1, YS)
    for g in preads(0, 0): S.add('rd', g, YS - 1, YS)
    tb3 = lambda n: T3[n, 3] + o['bo3']
    for n in range(14):
        for ks in range(4):
            n2, k2 = (n, ks + 1) if ks < 3 else (n + 1, 0)
            if n2 < 14:
                if k2 == 0: S.add('rd', bar(f'P{n2}', f'pr{n}'), tb3(n), tb3(n) + 1)
                n0, k0 = (n2, k2 - 2) if k2 >= 2 else (n2 - 1, k2 + 2)
                for q, g in enumerate(preads(n2, k2)):
                    S.add('rd', g, T3[n0, k0] + 2*q + 2 if n0 >= 0 else G3, T3[n2, k2] + 2*q, soft=min(T3[n2, k2] + 2*q, tb3(n2)) - LAT)
        if n + 4 < 14: S.vm(pdma(n + 4), tb3(n) + 1, tb3(n + 1) + 1, tb3(n + 1) + 20)
    L = ['v_lshrrev_b32 v4, 2, v0', 'v_lshlrev_b32 v4, 11, v4', 'v_and_b32 v5, 3, v0', 'v_lshlrev_b32 v6, 4, v5', f'v_add3_u32 v{EV}, v4, v6, s96'] + \
        [f'v_add_u32 v{EV+j}, {32768*j}, v{EV}' for j in range(1, 4)] + [
         's_add_u32 s4, s85, 4096', f'v_add_u32 v{OA}, s84, v{LN16}', f'v_add_u32 v{OA+1}, s4, v{LN16}', f'v_add_u32 v{OA+2}, s61, v{LN16}',
         'v_bfe_u32 v4, v1, 2, 1', 'v_lshlrev_b32 v4, 3, v4', 'v_and_b32 v6, 3, v1', 'v_add_u32 v4, v4, v6', 'v_lshlrev_b32 v4, 6, v4', 'v_lshl_add_u32 v4, v2, 3, v4',
         'v_lshrrev_b32 v6, 3, v1', f'v_lshl_add_u32 v{XA}, v6, 10, v4', f'v_add_u32 v{XA}, s84, v{XA}',
         's_sub_u32 s5, s61, s4', 'v_mul_lo_u32 v6, v6, s5', f'v_add3_u32 v{XA+1}, v6, v4, s4',
         'v_lshlrev_b32 v4, 2, v2', 'v_bfe_u32 v6, v0, 2, 2', 'v_add_u32 v4, v4, v6', 'v_lshlrev_b32 v4, 7, v4', 'v_lshl_add_u32 v4, v5, 4, v4', f'v_add_u32 v{YA}, s85, v4',
         'v_lshrrev_b32 v4, 3, v0', 'v_lshlrev_b32 v4, 12, v4', 'v_and_b32 v5, 7, v0', 'v_lshl_add_u32 v98, v5, 4, v4'] + \
        [f'v_add_u32 v{98+j}, {31744*j}, v98' for j in range(1, 4)] + \
        [f'buffer_load_dword v{ST + 2*q + k}, v190, {sr(WS)}, s60 offen offset:{256*(q//2) + 32*(q%2) + 8*k} sc1' for q in range(4) for k in range(2)]
    S.each('su', L, G3 + 2, T3[3, 0], soft=(G3, T3[3, 0]))
    S.add('su', [need_i('ys'), I(f'buffer_store_dword v{VN}, v{VF}, {sr(WS)}, s98 offen sc1')], G3 + o.get('yflag', 70))
    xm = ['s_mov_b32 m0, s84', 's_add_u32 m0, s84, 1024', 's_add_u32 m0, s85, 4096', 's_mov_b32 m0, s61']
    S.vm([[xm[j], grp(f'buffer_load_dwordx4 v{EV+j}, {sr(Q)}, s87 offen lds', 'ex')] for j in range(4)], T3[3, 0], T3[4, 0], T3[5, 0])
    ld = [f'buffer_load_dword v255, v254, {sr(WS)}, s99 offen sc1']
    S.add('su', ld, G3 + o['ypoll'], G3 + o['ypoll'] + 4)
    S.vm([[ck + poll('yf', ld, ck), 's_mov_b32 m0, s85'] + [grp(f'buffer_load_dwordx4 v{98+j}, {sr(WS)}, s100 offen offset:{1024*j} sc1 lds', 'ex') for j in range(4)]],
         G3 + o['ycheck'], G3 + o['ycheck'] + 16, G3 + o['ycheck'] + 40)
    L = []
    for q in range(4):
        for dt in range(2):
            k = 2*q + dt
            L += [f'ds_read_b64 {vr(XB+2*k, 2)}, v{XA + q//2} offset:{256*(q%2) + 32*dt}', f'ds_read_b64_tr_b16 {vr(YB+2*k, 2)}, v{YA} offset:{2048*dt + 64*(q//2) + 8*(q%2)}']
    L += [f'v_mul_f32 v{ST+2*q}, v{ST+2*q}, v{ST+2*q+1}' for q in range(4)]
    for q in range(4):
        for dt in range(2):
            k = 2*q + dt; e = E + 4*k; xb = XB + 2*k; yb = YB + 2*k
            L += [f'v_lshlrev_b32 v{e}, 16, v{xb}', f'v_and_b32 v{e+1}, 0xffff0000, v{xb}', f'v_lshlrev_b32 v{e+2}, 16, v{xb+1}', f'v_and_b32 v{e+3}, 0xffff0000, v{xb+1}']
            L += [f'v_lshlrev_b32 v104, 16, v{yb}', f'v_and_b32 v105, 0xffff0000, v{yb}', f'v_lshlrev_b32 v106, 16, v{yb+1}', f'v_and_b32 v107, 0xffff0000, v{yb+1}']
            L += [f'v_fma_f32 v{108+r}, v{e+r}, v{ST+2*q+1}, -v{ST+2*q}' for r in range(4)]
            L += [f'v_fmac_f32 v{e+r}, v{108+r}, v{104+r}' for r in range(4)]
    S.add('su', [need_i('ex')], G3 + o['eread'])
    S.each('su', L, G3 + o['eread'], F0, soft=(G3 + o['eread'], F0))
    for t in (P1, T1[4, 0], G0, P2, K0, G2, T2[1, 0], T2[8, 0], P0, CV, C1, G3, T3[7, 0], F0): stamp(t)

    P = Prog()
    P(f'.globl {label}\n.p2align 8\n.type {label},@function\n{label}:')
    import re as _re
    def filt(g):
        r = []
        for x in g:
            if o.get('nodma') and getattr(x, 'isdma', False): continue
            if o.get('nowait') and x.need: x.need = [t for t in x.need if not _re.fullmatch(r'[WXSZOP]\d+|cvu|cvh|ex', t)]
            if o.get('nopoll') and x.op == 's_cbranch_vccnz': continue
            if o.get('drop') and _re.search(o['drop'], x.text): continue
            r.append(x)
        return r
    for x in S.run(age=o.get('age', 6), filt=filt): P.add(x)
    P(f'{label}_end:\ns_endpgm')
    n0 = len(P.items); P.insert_waits(age=99); print('  late waits', len(P.items) - n0)
    P.pad_hazards(verbose=o.get('verbose', False))
    slow.pad_hazards(verbose=False)
    S.report(); print(' ', dict(P.count()), 'polls', polls)
    return P.text() + slow.text()

def write(path, aslist=False, **kw):
    o = dict(DEF); o.update(kw)
    label = NAME + '_kernel'
    body = build(label, o)
    hdr = f'; @launch {"kernel=" + label + " " if aslist else ""}grid=(256,1,1) block=(256,1,1) lds=163840\n'
    open(path, 'w').write(hdr + '.amdgcn_target "amdgcn-amd-amdhsa--gfx950"\n.text\n' + body + '.section .rodata,"a"\n.p2align 6\n' + desc(label, 512, 256))

if __name__ == '__main__':
    kw = {}
    for a in sys.argv[2:]:
        k, v = a.split('=', 1); kw[k] = int(v) if v.lstrip('-').isdigit() else v
    write(sys.argv[1], **kw)
```
